```python
import torch

def _softmax(x, axis=-1):
    return torch.softmax(x, dim=axis)
def _gelu(x):
    return torch.nn.functional.gelu(x, approximate="tanh")
def _silu(x):
    return torch.nn.functional.silu(x)
def _sigmoid(x):
    return torch.sigmoid(x)
def _layernorm(x, axis=-1, eps=1e-5):
    m = x.mean(dim=axis, keepdim=True)
    v = x.var(dim=axis, keepdim=True, unbiased=False)
    return (x - m) / torch.sqrt(v + eps)
def _scatter_add(tgt, idx, src, axis=0):
    return tgt.clone().index_add_(axis, idx, src)
def _segment_sum(src, seg, n):
    out = torch.zeros((n,) + src.shape[1:], dtype=src.dtype)
    return out.index_add_(0, seg, src)
def _pad(x, pw):
    flat = tuple(v for pair in reversed(pw) for v in pair)
    return torch.nn.functional.pad(x, flat)

kernel_name = 'sequential_preLN__sliding_block__geglu_ffn__prompt'

def setup_inputs():

    _w = (lambda a: (lambda t: t.to(torch.bfloat16) if t.is_floating_point() else t)(torch.as_tensor(a)))
    def _A_setup():
        B, S, D = 1, 2048, 512
        return {
            "x": _w((lambda *s: torch.randn(*s, dtype=torch.bfloat16) * 0.05)(B, S, D)),
            "wqkv": _w((lambda *s: torch.randn(*s, dtype=torch.bfloat16) * 0.05)(D, 3 * D)),
            "wo": _w((lambda *s: torch.randn(*s, dtype=torch.bfloat16) * 0.05)(D, D)),
        }
    _A_in = _A_setup()

    def _B_setup():
        B, S, D, F = 1, 2048, 512, 1376
        return {
            "x": _w((lambda *s: torch.randn(*s, dtype=torch.bfloat16) * 0.05)(B, S, D)),
            "w_gate": _w((lambda *s: torch.randn(*s, dtype=torch.bfloat16) * 0.05)(D, F)),
            "w_up": _w((lambda *s: torch.randn(*s, dtype=torch.bfloat16) * 0.05)(D, F)),
            "w_down": _w((lambda *s: torch.randn(*s, dtype=torch.bfloat16) * 0.05)(F, D)),
        }
    _B_in = _B_setup()

    return {
        "A_x": _A_in["x"],
        "A_wqkv": _A_in["wqkv"],
        "A_wo": _A_in["wo"],
        "B_x": _B_in["x"],
        "B_w_gate": _B_in["w_gate"],
        "B_w_up": _B_in["w_up"],
        "B_w_down": _B_in["w_down"],
    }

def reference(A_x, A_wqkv, A_wo, B_x, B_w_gate, B_w_up, B_w_down):
    def _A_ref(x, wqkv, wo):
        B, S, D = x.shape
        H = 32; Dh = D // H; W = 256
        qkv = (lambda x, *d: x.permute(*d))((x @ wqkv).reshape(B, S, 3, H, Dh), 2, 0, 3, 1, 4)
        q, k, v = qkv[0], qkv[1], qkv[2]
        scores = torch.einsum("bhqd,bhkd->bhqk", q, k) * (Dh ** -0.5)
        idx = torch.arange(S)
        mask = (idx[:, None] - idx[None, :] >= 0) & (idx[:, None] - idx[None, :] < W)
        scores = torch.where(mask[None, None], scores, -1e9)
        p = _softmax(scores, axis=-1)
        o = torch.einsum("bhqk,bhkd->bhqd", p, v)
        return (lambda x, *d: x.permute(*d))(o, 0, 2, 1, 3).reshape(B, S, D) @ wo

    def _B_ref(x, w_gate, w_up, w_down):
        return (_gelu(x @ w_gate) * (x @ w_up)) @ w_down

    x = A_x
    h = x + _A_ref(_layernorm(x, axis=-1), A_wqkv, A_wo)
    h2 = h + _B_ref(_layernorm(h, axis=-1), B_w_gate, B_w_up, B_w_down)
    return h2
```

```python
import re


def vr(lo, n=1):
    return f"v{lo}" if n == 1 else f"v[{lo}:{lo + n - 1}]"


def ar(lo, n=1):
    return f"a{lo}" if n == 1 else f"a[{lo}:{lo + n - 1}]"


def sr(lo, n=1):
    return f"s{lo}" if n == 1 else f"s[{lo}:{lo + n - 1}]"


_REG = re.compile(r"\b([vas])(\d+)\b|\b([vas])\[(\d+):(\d+)\]")


def regs_of(op):
    out = set()
    op = op.strip()
    if op.startswith("-"):
        op = op[1:]
    if op.startswith("abs(") or op.startswith("|"):
        op = op.strip("|").replace("abs(", "").replace(")", "")
    if op in ("vcc", "vcc_lo", "vcc_hi"):
        return {("s", "vcc")}
    if op in ("exec", "exec_lo", "exec_hi"):
        return {("s", "exec")}
    if op == "m0":
        return {("s", "m0")}
    m = _REG.fullmatch(op)
    if not m:
        return out
    if m.group(1):
        out.add((m.group(1), int(m.group(2))))
    else:
        for i in range(int(m.group(4)), int(m.group(5)) + 1):
            out.add((m.group(3), i))
    return out


class Ins:
    __slots__ = ("text", "mn", "ops", "kind", "wr", "rd", "srcC", "srcAB", "is_label", "target", "states", "trans",
                 "comment", "mods")

    def __init__(self, text):
        self.text = text
        t = text.split(";")[0].strip()
        self.is_label = t.endswith(":")
        self.kind = "other"
        self.wr = set()
        self.rd = set()
        self.srcC = set()
        self.srcAB = set()
        self.target = None
        self.states = 1
        self.trans = False
        if self.is_label or not t or t.startswith("."):
            self.mn = ""
            self.ops = []
            self.states = 0
            self.kind = "label" if self.is_label else "dir"
            return
        parts = t.split(None, 1)
        self.mn = parts[0]
        rest = parts[1] if len(parts) > 1 else ""
        ops, depth, cur = [], 0, ""
        for ch in rest:
            if ch == "[":
                depth += 1
            if ch == "]":
                depth -= 1
            if ch == "," and depth == 0:
                ops.append(cur.strip())
                cur = ""
            else:
                cur += ch
        if cur.strip():
            ops.append(cur.strip())
        self.mods = ""
        clean = []
        for o in ops:
            o2 = o.split()
            clean.append(o2[0] if o2 else o)
        self.ops = clean
        self.classify(rest)

    def classify(self, rest):
        mn, ops = self.mn, self.ops
        R = regs_of
        if mn.startswith("v_mfma"):
            self.kind = "mfma"
            self.wr = R(ops[0])
            self.srcAB = R(ops[1]) | R(ops[2])
            self.srcC = R(ops[3])
            self.rd = self.srcAB | self.srcC
        elif mn.startswith("v_"):
            self.kind = "valu"
            base = mn.replace("_e32", "").replace("_e64", "").replace("_dpp", "").replace("_sdwa", "")
            self.trans = base in ("v_exp_f32", "v_log_f32", "v_rcp_f32", "v_rsq_f32", "v_sqrt_f32", "v_sin_f32",
                                  "v_cos_f32")
            if base.startswith("v_cmp"):
                self.wr = R(ops[0])
                for o in ops[1:]:
                    self.rd |= R(o)
            elif base.startswith("v_permlane") and "swap" in base:
                self.wr = R(ops[0]) | R(ops[1])
                self.rd = set(self.wr)
                self.kind = "permlane"
            elif base in ("v_readfirstlane_b32", "v_readlane_b32"):
                self.wr = R(ops[0])
                for o in ops[1:]:
                    self.rd |= R(o)
                self.kind = "readlane"
            else:
                self.wr = R(ops[0])
                for o in ops[1:]:
                    self.rd |= R(o)
                if base in ("v_fmac_f32", "v_mac_f32", "v_dot2c_f32_bf16", "v_writelane_b32"):
                    self.rd |= self.wr
                if base in ("v_add_co_u32", "v_sub_co_u32", "v_addc_co_u32"):
                    self.wr |= R(ops[1])
                if base == "v_cndmask_b32" and len(ops) == 3:
                    self.rd |= {("s", "vcc")}
            if "_dpp" in mn or "row_" in rest or "quad_perm" in rest:
                self.kind = "dpp"
                self.rd |= self.wr
        elif mn.startswith("ds_"):
            self.kind = "ds"
            if mn.startswith("ds_read") or mn.startswith("ds_bpermute") or mn.startswith("ds_swizzle"):
                self.wr = R(ops[0])
                for o in ops[1:]:
                    self.rd |= R(o)
            else:
                for o in ops:
                    self.rd |= R(o)
        elif mn.startswith("buffer_") or mn.startswith("global_"):
            self.kind = "vmem"
            lds = re.search(r"\blds\b", rest) is not None or "load_lds" in mn
            if mn in ("buffer_wbl2", "buffer_inv"):
                pass
            elif "load" in mn and not lds:
                self.wr = R(ops[0])
                for o in ops[1:]:
                    self.rd |= R(o)
            else:
                for o in ops:
                    self.rd |= R(o)
                if lds:
                    self.rd |= {("s", "m0")}
                    self.kind = "dma"
                elif "store" in mn:
                    self.kind = "store"
        elif mn.startswith("s_"):
            self.kind = "salu"
            if mn == "s_nop":
                self.states = int(ops[0], 0) + 1
            elif mn.startswith("s_cbranch") or mn == "s_branch":
                self.kind = "branch"
                self.target = ops[0]
            elif mn in ("s_waitcnt", "s_barrier", "s_endpgm", "s_sleep", "s_setprio"):
                pass
            elif mn.startswith("s_cmp"):
                for o in ops:
                    self.rd |= R(o)
            elif mn.startswith("s_load") or mn.startswith("s_mem"):
                self.kind = "smem"
                self.wr = R(ops[0])
                for o in ops[1:]:
                    self.rd |= R(o)
            else:
                self.wr = R(ops[0])
                for o in ops[1:]:
                    self.rd |= R(o)


def is_vec(r):
    return r[0] in ("v", "a")


class Asm:
    def __init__(self):
        self.ins = []
        self.vm = []
        self.lg = []
        self.nlabel = 0

    def e(self, text):
        for line in text.split("\n"):
            line = line.strip()
            if line:
                self.ins.append(Ins(line))

    def c(self, text):
        self.ins.append(Ins("; " + text))

    def label(self, name):
        self.ins.append(Ins(name + ":"))

    def newlabel(self, base="L"):
        self.nlabel += 1
        return f"{base}_{self.nlabel}"

    def vmem(self, text, tag=None):
        self.e(text)
        self.vm.append(tag)

    def ds(self, text, tag=None):
        self.e(text)
        self.lg.append(tag)

    def wait_vm(self, tag):
        idx = max((i for i, t in enumerate(self.vm) if t == tag), default=None)
        if idx is None:
            return
        n = len(self.vm) - 1 - idx
        self.e(f"s_waitcnt vmcnt({min(n, 63)})")
        if n <= 63:
            self.vm = self.vm[idx + 1:]

    def wait_vm_n(self, n):
        self.e(f"s_waitcnt vmcnt({n})")
        if len(self.vm) > n:
            self.vm = self.vm[len(self.vm) - n:] if n else []

    def wait_lg(self, tag):
        idx = max((i for i, t in enumerate(self.lg) if t == tag), default=None)
        if idx is None:
            return
        n = len(self.lg) - 1 - idx
        self.e(f"s_waitcnt lgkmcnt({min(n, 15)})")
        if n <= 15:
            self.lg = self.lg[idx + 1:]
        else:
            self.lg = self.lg[len(self.lg) - 15:]

    def wait_lg0(self):
        self.e("s_waitcnt lgkmcnt(0)")
        self.lg = []

    def wait_all(self):
        self.e("s_waitcnt vmcnt(0) lgkmcnt(0)")
        self.vm = []
        self.lg = []

    def finalize(self, verbose=False):
        out = []
        pend = {}
        saved = {}
        nins = 0

        def age_all(d, n):
            for k in list(d):
                d[k] += n
                if d[k] > 24:
                    del d[k]

        def need(i):
            req = 0

            def chk(cls, regs, dist):
                nonlocal req
                for r in regs:
                    a = pend.get((cls, r))
                    if a is not None and a < dist:
                        req = max(req, dist - a)

            vrd = {r for r in i.rd if is_vec(r)}
            vwr = {r for r in i.wr if is_vec(r)}
            srd = {r for r in i.rd if not is_vec(r)}
            if i.kind == "mfma":
                chk("valu_w", vrd, 2)
                chk("mfma_d", i.srcAB, 12)
                for r in i.srcC:
                    a = pend.get(("mfma_d", r))
                    if a is not None and a < 10:
                        if pend.get(("mfma_dt", r), None) is not None and self._dt.get(r) != frozenset(i.srcC):
                            req = max(req, 10 - a)
                for r in i.wr:
                    a = pend.get(("mfma_d", r))
                    if a is not None and a < 12 and self._dt.get(r) != frozenset(i.wr):
                        req = max(req, 12 - a)
                chk("valu_exec", [("s", "exec")], 4)
            elif i.kind in ("valu", "dpp", "permlane", "readlane"):
                chk("mfma_d", vrd | vwr, 12)
                chk("mfma_c", vwr, 7)
                if not i.trans:
                    chk("trans_w", vrd, 1)
                chk("valu_sw", srd, 2)
                chk("store_d", vwr, 2)
                if i.kind == "dpp":
                    chk("valu_w", vrd, 2)
                if i.kind == "permlane":
                    chk("valu_w", vrd, 2)
                if i.kind == "readlane":
                    chk("valu_w", vrd, 1)
                    chk("valu_sw", srd, 4)
            elif i.kind in ("vmem", "store", "dma", "ds"):
                chk("mfma_d", vrd | vwr, 12)
                chk("valu_sw", srd, 5)
                chk("store_d", vwr, 1)
                if i.kind == "dma":
                    chk("salu_m0", [("s", "m0")], 1)
                if vrd:
                    chk("trans_w", vrd, 1)
            elif i.kind in ("salu", "smem", "branch"):
                chk("valu_sw", srd, 2)
                if i.mn.startswith("s_cbranch_vcc"):
                    chk("valu_sw", [("s", "vcc")], 5)
            return req

        self._dt = {}
        for i in self.ins:
            if i.kind == "label":
                name = i.text.strip()[:-1]
                for d in saved.pop(name, []):
                    for k, a in d.items():
                        pend[k] = min(pend.get(k, 99), a)
                out.append(i)
                continue
            if i.kind == "dir" or i.mn == "":
                out.append(i)
                continue
            req = need(i)
            while req > 0:
                n = min(req, 16)
                out.append(Ins(f"s_nop {n - 1}"))
                nins += 1
                age_all(pend, n)
                req -= n
            out.append(i)
            age_all(pend, i.states)
            if i.kind == "mfma":
                for r in i.wr:
                    pend[("mfma_d", r)] = 0
                    pend[("mfma_dt", r)] = 0
                    self._dt[r] = frozenset(i.wr)
                for r in i.srcC:
                    pend[("mfma_c", r)] = 0
            elif i.kind in ("valu", "dpp", "permlane", "readlane"):
                for r in i.wr:
                    if is_vec(r):
                        pend[("valu_w", r)] = 0
                        if i.trans:
                            pend[("trans_w", r)] = 0
                        else:
                            pend.pop(("trans_w", r), None)
                    else:
                        pend[("valu_sw", r)] = 0
            elif i.kind == "store":
                if "x4" in i.mn or "x3" in i.mn:
                    for r in regs_of(i.ops[0]):
                        pend[("store_d", r)] = 0
            elif i.kind == "salu":
                if ("s", "m0") in i.wr:
                    pend[("salu_m0", ("s", "m0"))] = 0
            if i.kind == "branch":
                saved.setdefault(i.target, []).append(dict(pend))
        if verbose:
            print(f"hazard pass inserted {nins} s_nop")
        self.out = out
        return out

    def text(self):
        lines = []
        for i in self.out:
            if i.kind == "label":
                lines.append(i.text)
            else:
                lines.append("    " + i.text)
        return "\n".join(lines) + "\n"
```

```python
import sys
import os
sys.path.insert(0, os.path.dirname(__file__))
from asmdsl import Asm, vr, ar, sr

KNAME = "sequential_preLN__sliding_block__geglu_ffn__prompt_kernel"

XNA = 0x0000000
XNB = 0x0200000
KB = 0x0400000
VB = 0x0600000
OB = 0x0800000
HN = 0x0A00000
ACT = 0x0C00000
ST = 0x1200000
FLG = 0x1300000
FLS = 0x1340000
FL2 = 0x1380000
PROF = 0x1400000
WS_BYTES = 0x10000000

R = [i * 32768 for i in range(5)]
LDS_BYTES = 163840
SCR0 = LDS_BYTES - 8192

S1, S3, S4A, S4B, S5 = 0, 1, 2, 3, 4

POLL_LIMIT = 400000

SRD_X, SRD_WQKV, SRD_WO, SRD_WG, SRD_WU, SRD_WD, SRD_OUT, SRD_DBG, SRD_WS = 8, 12, 16, 20, 24, 28, 32, 36, 40
s_rb, s_j, s_w, s_tb, s_nonce, s_mode, s_xcc, s_tb3, s_kh, s_cs, s_fb = 44, 45, 46, 47, 48, 49, 50, 51, 52, 53, 54
s_t0, s_t1, s_t2, s_t3, s_t4, s_t5, s_t6, s_t7 = 56, 57, 58, 59, 60, 61, 62, 63
s_wq = 64
s_dm0, s_dso = 65, 66
s_cnt = 67
s_p0 = 68
s_err = 69
s_vmask = 70
s_prof = 84
s_tm = 100

v_tid, v_lane, v_l16 = 0, 1, 2
v_dq, v_dg, v_d128 = 3, 4, 5
v_tr = 6
v_tmp = 12
v_xres = 192
v_bold, v_bdiag, v_pmask = 200, 216, 232
v_vp8 = 240
v_prof = 27

NEG_BITS = 0xF149F2CA


class Gen:
    def __init__(self, stop_after=99, profile=False):
        self.a = Asm()
        self.stop_after = stop_after
        self.profile = profile
        self.nstamp = 0

    def stamp(self, name=""):
        if not self.profile:
            return
        a = self.a
        assert self.nstamp < 64
        a.e(f"s_memtime {sr(s_tm, 2)}")
        a.wait_lg0()
        a.e(f"v_writelane_b32 v{v_prof}, s{s_tm}, {self.nstamp}")
        a.c(f"stamp {self.nstamp}: {name}")
        self.stamp_names = getattr(self, "stamp_names", []) + [name]
        self.nstamp += 1

    def dma_slab(self, kind, srd, lds_base, row0, nrows, colbyte_sreg, colbyte_imm, nwaves, tag, emit=None):
        a = self.a
        rs, rpi, voff = {"T64q": (3072, 16, v_dq), "T64g": (2752, 16, v_dg), "T128": (1024, 8, v_d128)}[kind]
        ninstr = nrows // rpi
        assert nrows % rpi == 0
        per = -(-ninstr // nwaves)
        ops = []

        def setup():
            a.e(f"s_mul_i32 s{s_t0}, s{s_wq}, {per}")
            a.e(f"s_min_u32 s{s_t0}, s{s_t0}, {ninstr - per}")
            a.e(f"s_lshl_b32 s{s_dm0}, s{s_t0}, 10")
            a.e(f"s_add_u32 s{s_dm0}, s{s_dm0}, {lds_base}")
            a.e(f"s_mul_i32 s{s_dso}, s{s_t0}, {rpi * rs}")
            if isinstance(row0, tuple):
                sreg, mul, imm = row0
                a.e(f"s_mul_i32 s{s_t0}, s{sreg}, {mul * rs}")
                a.e(f"s_add_u32 s{s_dso}, s{s_dso}, s{s_t0}")
                base = imm * rs + colbyte_imm
            else:
                base = row0 * rs + colbyte_imm
            if colbyte_sreg is not None:
                a.e(f"s_add_u32 s{s_dso}, s{s_dso}, s{colbyte_sreg}")
            if base:
                a.e(f"s_add_u32 s{s_dso}, s{s_dso}, {base}")

        def mk(n):
            def f():
                if n == 0:
                    setup()
                a.e(f"s_mov_b32 m0, s{s_dm0}")
                a.e(f"s_add_u32 s{s_dm0}, s{s_dm0}, 1024")
                a.vmem(f"buffer_load_dwordx4 v{voff}, {sr(srd, 4)}, s{s_dso} offen lds", tag)
                if n != per - 1:
                    a.e(f"s_add_u32 s{s_dso}, s{s_dso}, {rpi * rs}")
            return f

        return [mk(n) for n in range(per)]

    def set_wq(self, nwaves):
        a = self.a
        if nwaves == 3:
            a.e(f"s_sub_u32 s{s_wq}, s{s_w}, 1")
        else:
            a.e(f"s_mov_b32 s{s_wq}, s{s_w}")

    def err(self, code):
        pass

    def poll64(self, flag_off_sreg, nlanes_mask=None):
        a = self.a
        lp = a.newlabel("L_poll")
        dn = a.newlabel("L_polld")
        a.e(f"v_lshlrev_b32 v{v_tmp}, 3, v{v_lane}")
        a.e(f"s_mov_b32 s{s_cnt}, 0")
        a.label(lp)
        a.e(f"buffer_load_dword v{v_tmp + 1}, v{v_tmp}, {sr(SRD_WS, 4)}, s{flag_off_sreg} offen sc1")
        a.e("s_waitcnt vmcnt(0)")
        a.e(f"v_cmp_eq_u32 vcc, s{s_nonce}, v{v_tmp + 1}")
        a.e(f"s_add_u32 s{s_cnt}, s{s_cnt}, 1")
        a.e(f"s_cmp_gt_u32 s{s_cnt}, {POLL_LIMIT}")
        a.e(f"s_cbranch_scc1 {dn}")
        a.e("s_cmp_eq_u64 vcc, -1")
        a.e(f"s_cbranch_scc0 {lp}")
        a.label(dn)
        a.e(f"s_cmp_gt_u32 s{s_cnt}, {POLL_LIMIT}")
        a.e(f"s_cselect_b32 s{s_t0}, 1, 0")
        a.e(f"s_or_b32 s{s_err}, s{s_err}, s{s_t0}")

    def flag_store(self, off_sreg):
        a = self.a
        l1 = a.newlabel("L_fs")
        l2 = a.newlabel("L_fe")
        a.e(f"v_mov_b32 v{v_tmp}, s{s_nonce}")
        a.e(f"v_mov_b32 v{v_tmp + 1}, 0")
        a.e("s_mov_b64 exec, 1")
        a.e(f"s_cmp_eq_u32 s{s_mode}, 1")
        a.e(f"s_cbranch_scc0 {l1}")
        a.e(f"buffer_store_dword v{v_tmp}, v{v_tmp + 1}, {sr(SRD_WS, 4)}, s{off_sreg} offen")
        a.e(f"s_branch {l2}")
        a.label(l1)
        a.e(f"buffer_store_dword v{v_tmp}, v{v_tmp + 1}, {sr(SRD_WS, 4)}, s{off_sreg} offen sc1")
        a.label(l2)
        a.vm.append("flag")
        a.e("s_mov_b64 exec, -1")

    def stores_mode(self, lst, tag):
        a = self.a
        l1 = a.newlabel("L_ss")
        l2 = a.newlabel("L_se")
        a.e(f"s_cmp_eq_u32 s{s_mode}, 1")
        a.e(f"s_cbranch_scc0 {l1}")
        for t in lst:
            a.e(t)
        a.e(f"s_branch {l2}")
        a.label(l1)
        for t in lst:
            a.e(t + " sc1")
        a.label(l2)
        for t in lst:
            a.vm.append(tag)

    def cluster_sync(self, sid, window_dma=None):
        a = self.a
        a.wait_vm("pub")
        a.e(f"s_lshl_b32 s{s_t1}, s{s_rb}, 9")
        a.e(f"s_add_u32 s{s_t1}, s{s_t1}, {FLG + sid * 16 * 512}")
        a.e(f"s_lshl_b32 s{s_t2}, s{s_j}, 2")
        a.e(f"s_add_u32 s{s_t2}, s{s_t2}, s{s_w}")
        a.e(f"s_lshl_b32 s{s_t2}, s{s_t2}, 3")
        a.e(f"s_add_u32 s{s_t2}, s{s_t2}, s{s_t1}")
        self.flag_store(s_t2)
        lw = a.newlabel("L_w0")
        le = a.newlabel("L_we")
        a.e(f"s_cmp_eq_u32 s{s_w}, 0")
        a.e(f"s_cbranch_scc1 {lw}")
        if window_dma:
            self.set_wq(3)
            window_dma()
        a.e(f"s_branch {le}")
        a.label(lw)
        self.poll64(s_t1)
        a.label(le)
        a.e("s_barrier")

    def finish(self):
        a = self.a
        a.label("L_finish")
        a.wait_all()
        lskip = a.newlabel("L_noerr")
        a.e(f"s_cmp_eq_u32 s{s_err}, 0")
        a.e(f"s_cbranch_scc1 {lskip}")
        a.e(f"v_mov_b32 v{v_tmp}, s{s_err}")
        a.e(f"v_mov_b32 v{v_tmp + 1}, 4")
        a.e(f"buffer_store_dword v{v_tmp}, v{v_tmp + 1}, {sr(SRD_DBG, 4)}, 0 offen")
        a.label(lskip)
        if self.profile:
            a.e(f"s_lshl_b32 s{s_t0}, s2, 2")
            a.e(f"s_add_u32 s{s_t0}, s{s_t0}, s{s_w}")
            a.e(f"s_lshl_b32 s{s_t0}, s{s_t0}, 8")
            a.e(f"s_add_u32 s{s_t0}, s{s_t0}, {PROF}")
            a.e(f"v_lshlrev_b32 v{v_tmp}, 2, v{v_lane}")
            a.e(f"buffer_store_dword v{v_prof}, v{v_tmp}, {sr(SRD_WS, 4)}, s{s_t0} offen")
        a.e("s_waitcnt vmcnt(0)")
        a.label("L_exit")
        a.e("s_endpgm")

    def prologue(self):
        a = self.a
        a.e("s_cmp_ge_u32 s2, 256")
        a.e("s_cbranch_scc1 L_exit")
        a.e("s_load_dwordx16 s[64:79], s[0:1], 0")
        a.e("s_load_dwordx4 s[56:59], s[0:1], 64")
        if self.profile:
            a.e(f"s_memtime {sr(s_tm, 2)}")
        a.e(f"s_getreg_b32 s{s_xcc}, hwreg(HW_REG_XCC_ID)")
        a.e(f"s_and_b32 s{s_xcc}, s{s_xcc}, 15")
        a.e(f"s_and_b32 s{s_rb}, s2, 7")
        a.e(f"s_lshl_b32 s{s_rb}, s{s_rb}, 1")
        a.e(f"s_bfe_u32 s{s_j}, s2, 0x10003")
        a.e(f"s_add_u32 s{s_rb}, s{s_rb}, s{s_j}")
        a.e(f"s_lshr_b32 s{s_j}, s2, 4")
        a.e(f"v_lshrrev_b32 v{v_tmp}, 6, v0")
        a.e(f"v_and_b32 v{v_lane}, 63, v0")
        a.e(f"v_readfirstlane_b32 s{s_w}, v{v_tmp}")
        a.e(f"v_lshlrev_b32 v{v_l16}, 4, v{v_lane}")
        a.e(f"s_mov_b32 s{s_mode}, 0")
        a.e(f"s_lshl_b32 s{s_tb}, s{s_rb}, 2")
        a.e(f"s_add_u32 s{s_tb}, s{s_tb}, s{s_w}")
        a.e(f"s_and_b32 s{s_cs}, s{s_j}, 7")
        a.e(f"s_lshr_b32 s{s_kh}, s{s_w}, 1")
        a.e(f"s_lshr_b32 s{s_tb3}, s{s_j}, 3")
        a.e(f"s_lshl_b32 s{s_tb3}, s{s_tb3}, 1")
        a.e(f"s_and_b32 s{s_fb}, s{s_w}, 1")
        a.e(f"s_add_u32 s{s_tb3}, s{s_tb3}, s{s_fb}")
        a.e(f"s_lshl_b32 s{s_fb}, s{s_rb}, 2")
        a.e(f"s_add_u32 s{s_tb3}, s{s_tb3}, s{s_fb}")
        a.e(f"s_lshl_b32 s{s_fb}, s{s_cs}, 1")
        a.e(f"s_add_u32 s{s_fb}, s{s_fb}, s{s_kh}")
        a.e(f"s_mul_i32 s{s_p0 + 12}, s{s_j}, 43")
        a.e(f"v_lshrrev_b32 v{v_tmp}, 2, v{v_lane}")
        a.e(f"v_and_b32 v{v_tmp + 1}, 3, v{v_lane}")
        a.e(f"v_lshlrev_b32 v{v_tmp + 1}, 4, v{v_tmp + 1}")
        a.e(f"v_mul_u32_u24 v{v_dq}, 3072, v{v_tmp}")
        a.e(f"v_add_u32 v{v_dq}, v{v_dq}, v{v_tmp + 1}")
        a.e(f"v_mul_u32_u24 v{v_dg}, 2752, v{v_tmp}")
        a.e(f"v_add_u32 v{v_dg}, v{v_dg}, v{v_tmp + 1}")
        a.e(f"v_lshrrev_b32 v{v_tmp}, 3, v{v_lane}")
        a.e(f"v_and_b32 v{v_tmp + 1}, 7, v{v_lane}")
        a.e(f"v_lshlrev_b32 v{v_tmp + 2}, 1, v{v_tmp}")
        a.e(f"v_and_b32 v{v_tmp + 2}, 4, v{v_tmp + 2}")
        a.e(f"v_xor_b32 v{v_tmp + 1}, v{v_tmp + 1}, v{v_tmp + 2}")
        a.e(f"v_lshlrev_b32 v{v_tmp + 1}, 4, v{v_tmp + 1}")
        a.e(f"v_lshl_add_u32 v{v_d128}, v{v_tmp}, 10, v{v_tmp + 1}")
        a.e("s_waitcnt lgkmcnt(0)")
        if self.profile:
            a.e(f"v_writelane_b32 v{v_prof}, s{s_tm}, 0")
            self.nstamp = 1
            self.stamp_names = ["start"]
        for srd, lo, nbytes in ((SRD_X, 64, 2048 * 1024), (SRD_WQKV, 66, 512 * 3072), (SRD_WO, 68, 512 * 1024),
                                (SRD_WG, 72, 512 * 2752), (SRD_WU, 74, 512 * 2752), (SRD_WD, 76, 1376 * 1024),
                                (SRD_OUT, 78, 2048 * 1024), (SRD_DBG, 56, 256), (SRD_WS, 58, WS_BYTES)):
            a.e(f"s_mov_b32 s{srd}, s{lo}")
            a.e(f"s_and_b32 s{srd + 1}, s{lo + 1}, 0xffff")
            a.e(f"s_mov_b32 s{srd + 2}, {nbytes}")
            a.e(f"s_mov_b32 s{srd + 3}, 0x20000")
        a.e(f"s_lshr_b32 s{s_p0}, s80, 4")
        a.e(f"s_mov_b32 s{s_err}, 0")
        a.e(f"s_mov_b32 s{s_vmask}, 0xffff")
        a.e(f"s_mov_b32 s{s_vmask + 1}, 0xffff")

    def p0(self):
        a = self.a
        a.e(f"s_lshl_b32 s{s_t0}, s{s_rb}, 7")
        a.e(f"s_lshl_b32 s{s_t1}, s{s_j}, 3")
        a.e(f"s_add_u32 s{s_t0}, s{s_t0}, s{s_t1}")
        a.e(f"s_lshl_b32 s{s_t1}, s{s_w}, 1")
        a.e(f"s_add_u32 s{s_t0}, s{s_t0}, s{s_t1}")
        a.e(f"s_lshl_b32 s{s_t0}, s{s_t0}, 10")
        a.vmem(f"buffer_load_dwordx4 v[32:35], v{v_l16}, {sr(SRD_X, 4)}, s{s_t0} offen", "xrow")
        a.vmem(f"buffer_load_dwordx4 v[36:39], v{v_l16}, {sr(SRD_X, 4)}, s{s_t0} offen offset:1024", "xrow")
        a.e(f"v_and_b32 v{v_tmp}, 31, v{v_lane}")
        a.e(f"v_lshrrev_b32 v{v_tmp + 1}, 5, v{v_lane}")
        a.e(f"v_lshlrev_b32 v{v_tmp}, 10, v{v_tmp}")
        a.e(f"v_lshl_add_u32 v{v_tmp + 2}, v{v_tmp + 1}, 4, v{v_tmp}")
        a.e(f"s_lshl_b32 s{s_t1}, s{s_tb3}, 15")
        a.e(f"s_lshl_b32 s{s_t2}, s{s_fb}, 6")
        a.e(f"s_add_u32 s{s_t1}, s{s_t1}, s{s_t2}")
        a.vmem(f"buffer_load_dwordx4 {vr(v_xres, 4)}, v{v_tmp + 2}, {sr(SRD_X, 4)}, s{s_t1} offen", "xres")
        a.vmem(f"buffer_load_dwordx4 {vr(v_xres + 4, 4)}, v{v_tmp + 2}, {sr(SRD_X, 4)}, s{s_t1} offen offset:32", "xres")
        lw0 = a.newlabel("L_p0w0")
        lj = a.newlabel("L_p0j")
        a.e(f"s_cmp_eq_u32 s{s_w}, 0")
        a.e(f"s_cbranch_scc1 {lw0}")
        self.set_wq(3)
        a.e(f"s_lshl_b32 s{s_t7}, s{s_j}, 6")
        ops = []
        k_ops = self.dma_slab("T64q", SRD_WQKV, R[0], 0, 512, s_t7, 1024, 3, "w1")
        v_ops = self.dma_slab("T64q", SRD_WQKV, R[1], 0, 512, s_t7, 2048, 3, "w1")
        q_ops = self.dma_slab("T64q", SRD_WQKV, R[2], 0, 512, s_t7, 0, 3, "w1")
        for f in k_ops + v_ops + q_ops:
            f()
        a.e(f"s_lshl_b32 s{s_t7}, s{s_cs}, 7")
        for f in self.dma_slab("T128", SRD_WO, R[3], 0, 448, s_t7, 0, 3, "wo"):
            f()
        a.e(f"s_branch {lj}")
        a.label(lw0)
        lnp = a.newlabel("L_nonp")
        a.e("s_cmp_eq_u32 s2, 0")
        a.e(f"s_cbranch_scc0 {lnp}")
        a.e(f"s_memrealtime {sr(s_t2, 2)}")
        a.e("s_waitcnt lgkmcnt(0)")
        a.e(f"s_or_b32 s{s_t2}, s{s_t2}, 1")
        a.e(f"v_mov_b32 v{v_tmp + 4}, s{s_t2}")
        a.e(f"v_mov_b32 v{v_tmp + 5}, 0")
        a.e("s_mov_b64 exec, 1")
        a.e(f"buffer_store_dword v{v_tmp + 4}, v{v_tmp + 5}, {sr(SRD_DBG, 4)}, 0 offen sc1")
        a.e("s_mov_b64 exec, -1")
        a.label(lnp)
        a.e(f"s_getpc_b64 {sr(s_t2, 2)}")
        a.label("L_pcref")
        a.e(f"s_bfe_u32 s{s_t4}, s2, 0x20003")
        a.e(f"s_mul_i32 s{s_t4}, s{s_t4}, CODE_Q")
        a.e(f"v_add_u32 v{v_tmp + 6}, s{s_t4}, v{v_l16}")
        for i in range(self.code_q_instr):
            a.e(f"global_load_dwordx4 v[28:31], v{v_tmp + 6}, {sr(s_t2, 2)}")
            a.e(f"v_add_u32 v{v_tmp + 6}, 1024, v{v_tmp + 6}")
        a.label(lj)
        self.consts()
        ndma = 33 + 19
        l0 = a.newlabel("L_xw0")
        l1 = a.newlabel("L_xw1")
        a.e(f"s_cmp_eq_u32 s{s_w}, 0")
        a.e(f"s_cbranch_scc1 {l0}")
        a.e(f"s_waitcnt vmcnt({2 + ndma})")
        a.e(f"s_branch {l1}")
        a.label(l0)
        a.e(f"s_waitcnt vmcnt({2 + self.code_q_instr})")
        a.label(l1)
        self.ln_rows()
        a.e(f"s_lshl_b32 s{s_t0}, s{s_w}, 11")
        a.e(f"s_add_u32 s{s_t0}, s{s_t0}, {SCR0}")
        a.e(f"v_add_u32 v{v_tmp}, s{s_t0}, v{v_l16}")
        a.ds(f"ds_write_b128 v{v_tmp}, v[56:59]")
        a.ds(f"ds_write_b128 v{v_tmp}, v[60:63] offset:1024")
        ln = a.newlabel("L_nn")
        a.e(f"s_cmp_eq_u32 s{s_w}, 0")
        a.e(f"s_cbranch_scc0 {ln}")
        lp = a.newlabel("L_np")
        ld = a.newlabel("L_npd")
        a.e(f"v_mov_b32 v{v_tmp + 1}, 0")
        a.e(f"s_mov_b32 s{s_cnt}, 0")
        a.label(lp)
        a.e(f"buffer_load_dword v{v_tmp + 2}, v{v_tmp + 1}, {sr(SRD_DBG, 4)}, 0 offen sc1")
        a.e("s_waitcnt vmcnt(0)")
        a.e(f"v_readfirstlane_b32 s{s_nonce}, v{v_tmp + 2}")
        a.e(f"s_add_u32 s{s_cnt}, s{s_cnt}, 1")
        a.e(f"s_cmp_gt_u32 s{s_cnt}, {POLL_LIMIT}")
        a.e(f"s_cbranch_scc1 {ld}")
        a.e(f"s_cmp_eq_u32 s{s_nonce}, 0")
        a.e(f"s_cbranch_scc1 {lp}")
        a.label(ld)
        a.e(f"s_cmp_gt_u32 s{s_cnt}, {POLL_LIMIT}")
        a.e(f"s_cselect_b32 s{s_t0}, 1, 0")
        a.e(f"s_or_b32 s{s_err}, s{s_err}, s{s_t0}")
        a.label(ln)
        a.wait_lg0()
        a.e("s_barrier")
        self.stamp("p0 ln done")
        le = a.newlabel("L_s1e")
        a.e(f"s_cmp_eq_u32 s{s_w}, 0")
        a.e(f"s_cbranch_scc0 {le}")
        a.e(f"v_and_b32 v{v_tmp}, 7, v{v_lane}")
        a.e(f"v_lshrrev_b32 v{v_tmp + 1}, 3, v{v_lane}")
        a.e(f"v_lshlrev_b32 v{v_tmp + 2}, 10, v{v_tmp}")
        a.e(f"v_lshl_add_u32 v{v_tmp + 2}, v{v_tmp + 1}, 4, v{v_tmp + 2}")
        a.e(f"v_add_u32 v{v_tmp + 2}, {SCR0}, v{v_tmp + 2}")
        for i in range(8):
            a.e(f"ds_read_b128 {vr(32 + 4 * i, 4)}, v{v_tmp + 2} offset:{128 * i}")
        a.e(f"v_lshlrev_b32 v{v_tmp + 3}, 9, v{v_tmp + 1}")
        a.e(f"v_lshl_add_u32 v{v_tmp + 3}, v{v_tmp}, 4, v{v_tmp + 3}")
        a.e(f"s_lshr_b32 s{s_t0}, s{s_j}, 2")
        a.e(f"s_lshl_b32 s{s_t1}, s{s_rb}, 2")
        a.e(f"s_add_u32 s{s_t0}, s{s_t0}, s{s_t1}")
        a.e(f"s_lshl_b32 s{s_t0}, s{s_t0}, 15")
        a.e(f"s_and_b32 s{s_t1}, s{s_j}, 3")
        a.e(f"s_lshl_b32 s{s_t1}, s{s_t1}, 7")
        a.e(f"s_add_u32 s{s_t0}, s{s_t0}, s{s_t1}")
        a.e("s_waitcnt lgkmcnt(0)")
        for i in range(8):
            a.e(f"s_add_u32 s{s_t1}, s{s_t0}, {XNA + i * 4096}")
            a.e(f"buffer_store_dwordx4 {vr(32 + 4 * i, 4)}, v{v_tmp + 3}, {sr(SRD_WS, 4)}, s{s_t1} offen")
        for i in range(8):
            a.e(f"s_add_u32 s{s_t1}, s{s_t0}, {XNB + i * 4096}")
            a.e(f"buffer_store_dwordx4 {vr(32 + 4 * i, 4)}, v{v_tmp + 3}, {sr(SRD_WS, 4)}, s{s_t1} offen sc1")
        a.e("s_waitcnt vmcnt(8)")
        a.e(f"s_lshl_b32 s{s_t2}, s{s_rb}, 9")
        a.e(f"s_add_u32 s{s_t2}, s{s_t2}, {FLG + S1 * 16 * 512}")
        a.e(f"s_lshl_b32 s{s_t3}, s{s_j}, 3")
        a.e(f"s_add_u32 s{s_t3}, s{s_t3}, s{s_t2}")
        a.e(f"v_mov_b32 v{v_tmp + 4}, s{s_nonce}")
        a.e(f"v_mov_b32 v{v_tmp + 5}, s{s_xcc}")
        a.e(f"v_mov_b32 v{v_tmp + 6}, 0")
        a.e("s_mov_b64 exec, 1")
        a.e(f"buffer_store_dwordx2 {vr(v_tmp + 4, 2)}, v{v_tmp + 6}, {sr(SRD_WS, 4)}, s{s_t3} offen")
        a.e("s_waitcnt vmcnt(1)")
        a.e(f"s_lshl_b32 s{s_t4}, s{s_rb}, 11")
        a.e(f"s_add_u32 s{s_t4}, s{s_t4}, {FLS}")
        a.e(f"s_lshl_b32 s{s_t5}, s{s_j}, 7")
        a.e(f"s_add_u32 s{s_t5}, s{s_t5}, s{s_t4}")
        a.e(f"buffer_store_dword v{v_tmp + 4}, v{v_tmp + 6}, {sr(SRD_WS, 4)}, s{s_t5} offen sc1")
        a.e("s_mov_b64 exec, 0xffff")
        a.e(f"v_lshlrev_b32 v{v_tmp}, 3, v{v_lane}")
        a.e(f"v_lshlrev_b32 v{v_tmp + 1}, 7, v{v_lane}")
        a.e(f"s_mov_b32 s{s_cnt}, 0")
        lp = a.newlabel("L_s1p")
        lslow = a.newlabel("L_s1s")
        lfast = a.newlabel("L_s1f")
        ldone = a.newlabel("L_s1d")
        a.label(lp)
        a.e(f"buffer_load_dwordx2 {vr(v_tmp + 8, 2)}, v{v_tmp}, {sr(SRD_WS, 4)}, s{s_t2} offen sc1")
        a.e("s_waitcnt vmcnt(0)")
        a.e(f"v_cmp_eq_u32 vcc, s{s_nonce}, v{v_tmp + 8}")
        a.e(f"v_cmp_eq_u32 {sr(s_t6, 2)}, s{s_xcc}, v{v_tmp + 9}")
        a.e(f"s_add_u32 s{s_cnt}, s{s_cnt}, 1")
        a.e("s_nop 0")
        a.e(f"s_and_b64 vcc, vcc, {sr(s_t6, 2)}")
        a.e("s_cmp_eq_u64 vcc, 0xffff")
        a.e(f"s_cbranch_scc1 {lfast}")
        a.e(f"s_cmp_lt_u32 s{s_cnt}, 12")
        a.e(f"s_cbranch_scc1 {lp}")
        a.e(f"buffer_load_dword v{v_tmp + 10}, v{v_tmp + 1}, {sr(SRD_WS, 4)}, s{s_t4} offen sc1")
        a.e("s_waitcnt vmcnt(0)")
        a.e(f"v_cmp_eq_u32 vcc, s{s_nonce}, v{v_tmp + 10}")
        a.e(f"s_cmp_gt_u32 s{s_cnt}, {POLL_LIMIT}")
        a.e(f"s_cbranch_scc1 {lslow}")
        a.e("s_cmp_eq_u64 vcc, 0xffff")
        a.e(f"s_cbranch_scc0 {lp}")
        a.label(lslow)
        a.e(f"s_mov_b32 s{s_mode}, 0")
        a.e(f"s_cmp_gt_u32 s{s_cnt}, {POLL_LIMIT}")
        a.e(f"s_cselect_b32 s{s_t0}, 1, 0")
        a.e(f"s_or_b32 s{s_err}, s{s_err}, s{s_t0}")
        a.e(f"s_branch {ldone}")
        a.label(lfast)
        a.e(f"s_mov_b32 s{s_mode}, 1")
        a.label(ldone)
        a.e("s_mov_b64 exec, -1")
        a.e(f"v_mov_b32 v{v_tmp}, s{s_nonce}")
        a.e(f"v_mov_b32 v{v_tmp + 1}, s{s_mode}")
        a.e(f"v_mov_b32 v{v_tmp + 2}, {SCR0}")
        a.e(f"ds_write_b64 v{v_tmp + 2}, {vr(v_tmp, 2)}")
        a.e("s_waitcnt lgkmcnt(0)")
        a.label(le)
        a.e("s_barrier")
        a.e(f"v_mov_b32 v{v_tmp + 2}, {SCR0}")
        a.e(f"ds_read_b64 {vr(v_tmp, 2)}, v{v_tmp + 2}")
        a.e("s_waitcnt lgkmcnt(0)")
        a.e(f"v_readfirstlane_b32 s{s_nonce}, v{v_tmp}")
        a.e(f"v_readfirstlane_b32 s{s_mode}, v{v_tmp + 1}")
        self.stamp("s1 done")

    def consts(self):
        a = self.a
        a.e(f"v_mov_b32 v{v_tmp}, 0x3f803f80")
        for i in range(128, 256):
            a.e(f"v_accvgpr_write_b32 a{i}, v{v_tmp}")
        for i in range(16):
            a.e(f"v_mov_b32 v{v_vp8 + i}, v{v_tmp}")
        a.e(f"v_and_b32 v{v_tmp + 1}, 31, v{v_lane}")
        a.e(f"v_lshrrev_b32 v{v_tmp + 2}, 5, v{v_lane}")
        a.e(f"v_lshlrev_b32 v{v_tmp + 2}, 2, v{v_tmp + 2}")
        a.e(f"v_sub_u32 v{v_tmp + 1}, v{v_tmp + 1}, v{v_tmp + 2}")
        a.e(f"v_mov_b32 v{v_tmp + 3}, {NEG_BITS:#x}")
        for r in range(16):
            kk0 = 8 * (r // 4) + r % 4
            a.e(f"v_subrev_u32 v{v_tmp + 4}, {kk0}, v{v_tmp + 1}")
            a.e(f"v_ashrrev_i32 v{v_tmp + 4 + 1 + (r & 1)}, 31, v{v_tmp + 4}")
            m = v_tmp + 5 + (r & 1)
            a.e(f"v_and_b32 v{v_bdiag + r}, v{m}, v{v_tmp + 3}")
            a.e(f"v_bfi_b32 v{v_bold + r}, v{m}, 0, v{v_tmp + 3}")
            if r & 1:
                a.e(f"v_mov_b32 v{v_tmp + 7}, 0xffff")
                a.e(f"v_bfi_b32 v{v_tmp + 8}, v{v_tmp + 7}, v{v_tmp + 5}, v{v_tmp + 6}")
                a.e(f"v_not_b32 v{v_pmask + r // 2}, v{v_tmp + 8}")

    def wave_sum2(self, x0, x1, s0, s1):
        a = self.a
        for ctl in ("row_shr:1", "row_shr:2", "row_shr:4", "row_shr:8"):
            a.e(f"v_add_f32_dpp v{x0}, v{x0}, v{x0} {ctl} row_mask:0xf bank_mask:0xf bound_ctrl:0")
            a.e(f"v_add_f32_dpp v{x1}, v{x1}, v{x1} {ctl} row_mask:0xf bank_mask:0xf bound_ctrl:0")
        for ctl, rm in (("row_bcast:15", "0xa"), ("row_bcast:31", "0xc")):
            a.e(f"v_add_f32_dpp v{x0}, v{x0}, v{x0} {ctl} row_mask:{rm} bank_mask:0xf")
            a.e(f"v_add_f32_dpp v{x1}, v{x1}, v{x1} {ctl} row_mask:{rm} bank_mask:0xf")
        a.e(f"v_readlane_b32 s{s0}, v{x0}, 63")
        a.e(f"v_readlane_b32 s{s1}, v{x1}, 63")

    def ln_rows(self):
        a = self.a
        f0, f1 = 40, 48
        for base, src in ((f0, 32), (f1, 36)):
            for i in range(4):
                a.e(f"v_lshlrev_b32 v{base + 2 * i}, 16, v{src + i}")
                a.e(f"v_and_b32 v{base + 2 * i + 1}, 0xffff0000, v{src + i}")
        t0, t1 = 64, 68
        for base, t in ((f0, t0), (f1, t1)):
            a.e(f"v_add_f32 v{t}, v{base}, v{base + 1}")
            a.e(f"v_add_f32 v{t + 1}, v{base + 2}, v{base + 3}")
            a.e(f"v_add_f32 v{t + 2}, v{base + 4}, v{base + 5}")
            a.e(f"v_add_f32 v{t + 3}, v{base + 6}, v{base + 7}")
        for t in (t0, t1):
            a.e(f"v_add_f32 v{t}, v{t}, v{t + 1}")
            a.e(f"v_add_f32 v{t + 2}, v{t + 2}, v{t + 3}")
        for t in (t0, t1):
            a.e(f"v_add_f32 v{t}, v{t}, v{t + 2}")
        self.wave_sum2(t0, t1, s_t0, s_t1)
        a.e("v_mov_b32 v72, 0xbb000000")
        for base, s in ((f0, s_t0), (f1, s_t1)):
            for i in range(8):
                a.e(f"v_fma_f32 v{base + i}, s{s}, v72, v{base + i}")
        for base, t in ((f0, t0), (f1, t1)):
            a.e(f"v_mul_f32 v{t}, v{base}, v{base}")
            a.e(f"v_mul_f32 v{t + 1}, v{base + 1}, v{base + 1}")
        for i in range(2, 8, 2):
            for base, t in ((f0, t0), (f1, t1)):
                a.e(f"v_fmac_f32 v{t}, v{base + i}, v{base + i}")
                a.e(f"v_fmac_f32 v{t + 1}, v{base + i + 1}, v{base + i + 1}")
        for t in (t0, t1):
            a.e(f"v_add_f32 v{t}, v{t}, v{t + 1}")
        self.wave_sum2(t0, t1, s_t0, s_t1)
        a.e("v_mov_b32 v72, 0x3b000000")
        a.e("v_mov_b32 v73, 0x3727c5ac")
        a.e(f"v_fma_f32 v{t0}, s{s_t0}, v72, v73")
        a.e(f"v_fma_f32 v{t1}, s{s_t1}, v72, v73")
        a.e(f"v_rsq_f32 v{t0}, v{t0}")
        a.e(f"v_rsq_f32 v{t1}, v{t1}")
        for base, t in ((f0, t0), (f1, t1)):
            for i in range(8):
                a.e(f"v_mul_f32 v{base + i}, v{base + i}, v{t}")
        for base, d in ((f0, 56), (f1, 60)):
            for i in range(4):
                a.e(f"v_cvt_pk_bf16_f32 v{d + i}, v{base + 2 * i}, v{base + 2 * i + 1}")

    def tr_base_t64(self, dst, natural):
        a = self.a
        t = v_tmp
        a.e(f"v_lshrrev_b32 v{t}, 5, v{v_lane}")
        a.e(f"v_lshlrev_b32 v{t}, {3 if natural else 2}, v{t}")
        a.e(f"v_bfe_u32 v{t + 1}, v{v_lane}, 2, 2")
        a.e(f"v_add_u32 v{t}, v{t}, v{t + 1}")
        a.e(f"v_lshlrev_b32 v{t}, 6, v{t}")
        a.e(f"v_bfe_u32 v{t + 1}, v{v_lane}, 4, 1")
        a.e(f"v_lshl_add_u32 v{t}, v{t + 1}, 5, v{t}")
        a.e(f"v_and_b32 v{t + 1}, 3, v{v_lane}")
        a.e(f"v_lshl_add_u32 v{dst}, v{t + 1}, 3, v{t}")

    def tr_base_t128(self, dst_keep, dst_send):
        a = self.a
        t = v_tmp
        a.e(f"v_lshrrev_b32 v{t}, 5, v{v_lane}")
        a.e(f"v_lshlrev_b32 v{t}, 2, v{t}")
        a.e(f"v_bfe_u32 v{t + 1}, v{v_lane}, 2, 2")
        a.e(f"v_add_u32 v{t}, v{t}, v{t + 1}")
        a.e(f"v_lshlrev_b32 v{t}, 7, v{t}")
        a.e(f"v_lshrrev_b32 v{t + 1}, 1, v{t + 1}")
        a.e(f"v_xor_b32 v{t + 1}, s{s_kh}, v{t + 1}")
        a.e(f"v_lshl_add_u32 v{t}, v{t + 1}, 6, v{t}")
        a.e(f"v_bfe_u32 v{t + 1}, v{v_lane}, 4, 1")
        a.e(f"v_lshl_add_u32 v{t}, v{t + 1}, 5, v{t}")
        a.e(f"v_and_b32 v{t + 1}, 3, v{v_lane}")
        a.e(f"v_lshl_add_u32 v{dst_keep}, v{t + 1}, 3, v{t}")
        a.e(f"v_xor_b32 v{dst_send}, 64, v{dst_keep}")

    def load_frags(self, dsts, base_off, sreg_mul_terms, n, tag, flags="sc1"):
        a = self.a
        first = True
        for reg, mul in sreg_mul_terms:
            if first:
                a.e(f"s_mul_i32 s{s_t0}, s{reg}, {mul}")
                first = False
            else:
                a.e(f"s_mul_i32 s{s_t1}, s{reg}, {mul}")
                a.e(f"s_add_u32 s{s_t0}, s{s_t0}, s{s_t1}")
        return [self._frag_op(dsts[i], base_off, i, f"{tag}{i}", flags) for i in range(n)]

    def _frag_op(self, dst, base_off, i, tag, flags):
        a = self.a

        def f():
            if i % 4 == 0:
                a.e(f"s_add_u32 s{s_t2}, s{s_t0}, {base_off + (i // 4) * 4096}")
            off = f" offset:{(i % 4) * 1024}" if i % 4 else ""
            a.vmem(f"buffer_load_dwordx4 {dst}, v{v_l16}, {sr(SRD_WS, 4)}, s{s_t2} offen{off} {flags}", tag)
        return f

    def gemm_pass(self, nsteps, blocks, bfrag, fillers=None, pre=None, nbuf=3, abuf=64, wait_tag=None, zero_init=True,
                  step_hook=None):
        a = self.a
        nb = len(blocks)
        fillers = list(fillers or [])
        nm = nsteps * nb
        done = 0

        def reads(p):
            buf = abuf + (p % nbuf) * 4 * nb
            for bi, b in enumerate(blocks):
                va, o0, o1 = b["addr"](p)
                a.ds(f"ds_read_b64_tr_b16 {vr(buf + 4 * bi, 2)}, v{va} offset:{o0}", f"tr{p}")
                a.ds(f"ds_read_b64_tr_b16 {vr(buf + 4 * bi + 2, 2)}, v{va} offset:{o1}", f"tr{p}")

        for p in range(min(nbuf - 1, nsteps)):
            if step_hook:
                step_hook(p, "pre_read")
            reads(p)
        mcount = 0
        for p in range(nsteps):
            if p + nbuf - 1 < nsteps:
                if step_hook:
                    step_hook(p + nbuf - 1, "pre_read")
                reads(p + nbuf - 1)
            if wait_tag and wait_tag(p):
                a.wait_vm(wait_tag(p))
            a.wait_lg(f"tr{p}")
            buf = abuf + (p % nbuf) * 4 * nb
            for bi, b in enumerate(blocks):
                acc = vr(b["acc"], 16)
                A = vr(buf + 4 * bi, 4)
                B = bfrag(p)
                if b.get("swap"):
                    A, B = B, A
                c = acc if (p > 0 or not zero_init) else "0"
                a.e(f"v_mfma_f32_32x32x16_bf16 {acc}, {A}, {B}, {c}")
                mcount += 1
                target = (len(fillers) * mcount + nm - 1) // nm
                while done < min(target, len(fillers)):
                    fillers[done]()
                    done += 1
        while done < len(fillers):
            fillers[done]()
            done += 1

    def p1(self):
        a = self.a
        a.e("s_barrier")
        a.e(f"s_cmp_eq_u32 s{s_mode}, 1")
        a.e(f"s_cselect_b32 s{s_t7}, {XNA}, {XNB}")
        ops = self.load_frags([ar(4 * p, 4) for p in range(32)], 0, [(s_tb, 32768), (s_t7, 1)], 32, "xb")
        for f in ops:
            f()
        self.set_wq(4)
        a.e(f"s_lshl_b32 s{s_t7}, s{s_cs}, 7")
        for f in self.dma_slab("T128", SRD_WO, R[3] + 448 * 128, 448, 64, s_t7, 0, 4, "wo2"):
            f()
        self.tr_base_t64(v_tr, True)
        a.e(f"v_add_u32 v{v_tr + 1}, 65536, v{v_tr}")
        a.wait_vm_before = None
        n_younger = 32 + 2
        a.e(f"s_waitcnt vmcnt({n_younger})")
        a.e("s_barrier")
        self.stamp("p1 start")
        accK, accV, accQ = 32, 48, 96
        blocks = [dict(acc=accK, addr=lambda p: (v_tr, R[0] + p * 1024, R[0] + p * 1024 + 256)),
                  dict(acc=accV, addr=lambda p: (v_tr, R[1] + p * 1024, R[1] + p * 1024 + 256), swap=True)]
        self.gemm_pass(32, blocks, lambda p: ar(4 * p, 4), wait_tag=lambda p: f"xb{p}")
        self.stamp("p1 kv done")
        a.e("s_barrier")
        fill = []
        kp, vp = 112, 120
        for i in range(8):
            fill.append(lambda i=i: a.e(f"v_cvt_pk_bf16_f32 v{kp + i}, v{accK + 2 * i}, v{accK + 2 * i + 1}"))
        for i in range(8):
            fill.append(lambda i=i: a.e(f"v_cvt_pk_bf16_f32 v{vp + i}, v{accV + 2 * i}, v{accV + 2 * i + 1}"))

        def kv_stores():
            a.e(f"s_lshl_b32 s{s_t3}, s{s_tb}, 15")
            a.e(f"s_lshl_b32 s{s_t4}, s{s_j}, 11")
            a.e(f"s_add_u32 s{s_t3}, s{s_t3}, s{s_t4}")
            a.e(f"s_add_u32 s{s_t4}, s{s_t3}, {KB}")
            a.vmem(f"buffer_store_dwordx4 {vr(kp, 4)}, v{v_l16}, {sr(SRD_WS, 4)}, s{s_t4} offen sc1", "kvst")
            a.vmem(f"buffer_store_dwordx4 {vr(kp + 4, 4)}, v{v_l16}, {sr(SRD_WS, 4)}, s{s_t4} offen offset:1024 sc1", "kvst")
            a.e(f"s_add_u32 s{s_t4}, s{s_t3}, {VB}")
            a.vmem(f"buffer_store_dwordx4 {vr(vp, 4)}, v{v_l16}, {sr(SRD_WS, 4)}, s{s_t4} offen sc1", "kvst")
            a.vmem(f"buffer_store_dwordx4 {vr(vp + 4, 4)}, v{v_l16}, {sr(SRD_WS, 4)}, s{s_t4} offen offset:1024 sc1", "kvst")
        fill.append(kv_stores)
        if self.stop_after >= 4:
            def g0setup():
                self.set_wq(4)
                a.e(f"s_lshl_b32 s{s_t7}, s{s_p0}, 6")
            fill.append(g0setup)
            fill += self.dma_slab("T64g", SRD_WG, R[0], 0, 512, s_t7, 0, 4, "g0")
            fill += self.dma_slab("T64g", SRD_WU, R[1], 0, 512, s_t7, 0, 4, "u0")
        blocks = [dict(acc=accQ, addr=lambda p: (v_tr + 1, R[2] - 65536 + p * 1024, R[2] - 65536 + p * 1024 + 256))]
        a.e("s_nop 7")
        self.gemm_pass(32, blocks, lambda p: ar(4 * p, 4), fillers=fill, abuf=64)
        a.e(f"v_mov_b32 v{v_tmp}, 0x3eb8aa3b")
        for i in range(16):
            a.e(f"v_mul_f32 v{accQ + i}, v{accQ + i}, v{v_tmp}")
        for i in range(8):
            a.e(f"v_cvt_pk_bf16_f32 v{176 + i}, v{accQ + 2 * i}, v{accQ + 2 * i + 1}")
        self.stamp("p1 q done")
        a.wait_vm("kvst")
        a.e(f"s_lshl_b32 s{s_t1}, s{s_j}, 13")
        a.e(f"s_add_u32 s{s_t1}, s{s_t1}, {FL2}")
        a.e(f"s_lshl_b32 s{s_t2}, s{s_tb}, 7")
        a.e(f"s_add_u32 s{s_t2}, s{s_t2}, s{s_t1}")
        a.e(f"v_mov_b32 v{v_tmp}, s{s_nonce}")
        a.e(f"v_mov_b32 v{v_tmp + 1}, 0")
        a.e("s_mov_b64 exec, 1")
        a.vmem(f"buffer_store_dword v{v_tmp}, v{v_tmp + 1}, {sr(SRD_WS, 4)}, s{s_t2} offen sc1", "flag")
        a.e("s_mov_b64 exec, -1")
        a.e("s_barrier")
        lw = a.newlabel("L_s2w0")
        le = a.newlabel("L_s2e")
        a.e(f"s_cmp_eq_u32 s{s_w}, 0")
        a.e(f"s_cbranch_scc1 {lw}")
        if self.stop_after >= 4:
            self.set_wq(3)
            a.e(f"s_lshl_b32 s{s_t7}, s{s_p0}, 6")
            for f in self.dma_slab("T64g", SRD_WG, R[2], 0, 512, s_t7, 64, 3, "g1"):
                f()
        a.e(f"s_branch {le}")
        a.label(lw)
        a.e(f"s_lshl_b32 s{s_t3}, s{s_rb}, 2")
        a.e(f"s_sub_u32 s{s_t3}, s{s_t3}, 8")
        a.e(f"v_add_u32 v{v_tmp}, s{s_t3}, v{v_lane}")
        a.e(f"v_mov_b32 v{v_tmp + 2}, s{s_tb}")
        a.e(f"v_ashrrev_i32 v{v_tmp + 1}, 31, v{v_tmp}")
        a.e(f"v_bfi_b32 v{v_tmp}, v{v_tmp + 1}, v{v_tmp + 2}, v{v_tmp}")
        a.e(f"v_lshlrev_b32 v{v_tmp}, 7, v{v_tmp}")
        a.e("s_mov_b64 exec, 0xfff")
        a.e(f"s_mov_b32 s{s_cnt}, 0")
        lp = a.newlabel("L_s2p")
        ld = a.newlabel("L_s2d")
        a.label(lp)
        a.e(f"buffer_load_dword v{v_tmp + 1}, v{v_tmp}, {sr(SRD_WS, 4)}, s{s_t1} offen sc1")
        a.e("s_waitcnt vmcnt(0)")
        a.e(f"v_cmp_eq_u32 vcc, s{s_nonce}, v{v_tmp + 1}")
        a.e(f"s_add_u32 s{s_cnt}, s{s_cnt}, 1")
        a.e(f"s_cmp_gt_u32 s{s_cnt}, {POLL_LIMIT}")
        a.e(f"s_cbranch_scc1 {ld}")
        a.e("s_cmp_eq_u64 vcc, 0xfff")
        a.e(f"s_cbranch_scc1 {ld}")
        a.e("s_sleep 2")
        a.e(f"s_branch {lp}")
        a.label(ld)
        a.e("s_mov_b64 exec, -1")
        a.e(f"s_cmp_gt_u32 s{s_cnt}, {POLL_LIMIT}")
        a.e(f"s_cselect_b32 s{s_t0}, 1, 0")
        a.e(f"s_or_b32 s{s_err}, s{s_err}, s{s_t0}")
        a.label(le)
        a.e("s_barrier")
        self.stamp("s2 done")

    def kreg(self, b, h):
        return ar((b * 2 + h) * 4, 4)

    def vreg(self, b, h, st):
        if b < 8:
            return ar(128 + ((b * 2 + h) * 2 + st) * 4, 4)
        return vr(v_vp8 + (h * 2 + st) * 4, 4)

    def p2(self):
        a = self.a
        sblk = 72
        for b in range(9):
            a.e(f"s_sub_i32 s{s_t0}, s{s_tb}, {8 - b}")
            a.e(f"s_max_i32 s{s_t0}, s{s_t0}, 0")
            a.e(f"s_lshl_b32 s{sblk + b}, s{s_t0}, 15")
        a.e(f"s_lshl_b32 s{s_t1}, s{s_j}, 11")
        for b in range(9):
            a.e(f"s_add_u32 s{sblk + b}, s{sblk + b}, s{s_t1}")
        for b in range(9):
            a.e(f"s_add_u32 s{s_t2}, s{sblk + b}, {KB}")
            for h in range(2):
                off = " offset:1024" if h else ""
                a.vmem(f"buffer_load_dwordx4 {self.kreg(b, h)}, v{v_l16}, {sr(SRD_WS, 4)}, s{s_t2} offen{off} sc1", f"k{b}")
        a.e(f"s_mov_b64 exec, {sr(s_vmask, 2)}")
        for b in range(9):
            a.e(f"s_add_u32 s{s_t2}, s{sblk + b}, {VB}")
            for h in range(2):
                for st in range(2):
                    off = st * 1024 + h * 256
                    offs = f" offset:{off}" if off else ""
                    a.vmem(f"buffer_load_dwordx4 {self.vreg(b, h, st)}, v{v_l16}, {sr(SRD_WS, 4)}, s{s_t2} offen{offs} sc1", f"v{b}")
        a.e("s_mov_b64 exec, -1")
        Q = [vr(176, 4), vr(180, 4)]
        S = [[32, 48], [64, 80]]
        NEGM = [96, 112]
        O = [128, 144]
        P = [160, 168]
        M = [184, 186]
        neg = f"v{v_tmp}"
        a.e(f"v_mov_b32 {neg}, {NEG_BITS:#x}")
        for h in range(2):
            a.e(f"v_mov_b32 v{M[h]}, {neg}")
            a.e(f"v_mov_b32 v{M[h] + 1}, {neg}")
            for r in range(16):
                a.e(f"v_mov_b32 v{O[h] + r}, 0")

        def skip_label(b):
            return None

        def cbias(b):
            if b == 0:
                return vr(v_bold, 16)
            if b == 8:
                return vr(v_bdiag, 16)
            return "0"

        order = list(range(8, -1, -1))

        def smfma(h, b, buf, c):
            a.e(f"v_mfma_f32_32x32x16_bf16 {vr(S[h][buf], 16)}, {self.kreg(b, h)}, {Q[h]}, {c}")

        def maxes(h, buf):
            s = S[h][buf]
            for i in range(8):
                m = M[h] + (i & 1)
                a.e(f"v_max3_f32 v{m}, v{s + 2 * i}, v{s + 2 * i + 1}, v{m}")

        def guarded(b, fn):
            if b == 8:
                fn()
                return
            lab = a.newlabel("L_g")
            a.e(f"s_cmp_lt_u32 s{s_tb}, {8 - b}")
            a.e(f"s_cbranch_scc1 {lab}")
            fn()
            a.label(lab)

        a.wait_vm("k8")
        self.stamp("p2 k ready")
        for n in range(10):
            if n <= 8:
                b = order[n]
                guarded(b, lambda: (smfma(0, b, n & 1, cbias(b)), smfma(1, b, n & 1, cbias(b))))
            if n >= 1:
                guarded(order[n - 1], lambda: (maxes(0, (n - 1) & 1), maxes(1, (n - 1) & 1)))
        for h in range(2):
            a.e(f"v_max_f32 v{M[h]}, v{M[h]}, v{M[h] + 1}")
            a.e(f"v_mov_b32 v{M[h] + 1}, v{M[h]}")
        for h in range(2):
            a.e(f"v_permlane32_swap_b32 v{M[h]}, v{M[h] + 1}")
        for h in range(2):
            a.e(f"v_max_f32 v{M[h]}, v{M[h]}, v{M[h] + 1}")
            a.e(f"v_sub_f32 v{NEGM[h]}, 0, v{M[h]}")
        for h in range(2):
            for r in range(1, 16):
                a.e(f"v_mov_b32 v{NEGM[h] + r}, v{NEGM[h]}")
        self.stamp("p2 pass1 done")
        a.wait_vm("v8")

        def exps(h, buf, b):
            s = S[h][buf]
            for r in range(16):
                a.e(f"v_exp_f32 v{s + r}, v{s + r}")
            for i in range(8):
                a.e(f"v_cvt_pk_bf16_f32 v{P[h] + i}, v{s + 2 * i}, v{s + 2 * i + 1}")
            if b == 8:
                for i in range(8):
                    a.e(f"v_and_b32 v{P[h] + i}, v{v_pmask + i}, v{P[h] + i}")
            if b == 0:
                for i in range(8):
                    a.e(f"v_bfi_b32 v{P[h] + i}, v{v_pmask + i}, 0, v{P[h] + i}")

        def pv(h, b):
            a.e(f"v_mfma_f32_32x32x16_bf16 {vr(O[h], 16)}, {self.vreg(b, h, 0)}, {vr(P[h], 4)}, {vr(O[h], 16)}")
            a.e(f"v_mfma_f32_32x32x16_bf16 {vr(O[h], 16)}, {self.vreg(b, h, 1)}, {vr(P[h] + 4, 4)}, {vr(O[h], 16)}")

        for n in range(10):
            if n <= 8:
                b = order[n]
                guarded(b, lambda: (smfma(0, b, n & 1, vr(NEGM[0], 16)), smfma(1, b, n & 1, vr(NEGM[1], 16))))
            if n >= 1:
                pb = order[n - 1]
                guarded(pb, lambda: (exps(0, (n - 1) & 1, pb), pv(0, pb), exps(1, (n - 1) & 1, pb), pv(1, pb)))
        for h in range(2):
            a.e(f"v_rcp_f32 v{M[h]}, v{O[h] + 8}")
        for h in range(2):
            for r in range(8):
                a.e(f"v_mul_f32 v{O[h] + r}, v{O[h] + r}, v{M[h]}")
            for i in range(4):
                a.e(f"v_cvt_pk_bf16_f32 v{P[h] + i}, v{O[h] + 2 * i}, v{O[h] + 2 * i + 1}")
        self.stamp("p2 done")
        a.e(f"s_lshl_b32 s{s_t3}, s{s_tb}, 15")
        a.e(f"s_lshl_b32 s{s_t4}, s{s_j}, 11")
        a.e(f"s_add_u32 s{s_t3}, s{s_t3}, s{s_t4}")
        a.e(f"s_add_u32 s{s_t3}, s{s_t3}, {OB}")
        self.stores_mode([f"buffer_store_dwordx4 {vr(P[0], 4)}, v{v_l16}, {sr(SRD_WS, 4)}, s{s_t3} offen",
                          f"buffer_store_dwordx4 {vr(P[1], 4)}, v{v_l16}, {sr(SRD_WS, 4)}, s{s_t3} offen offset:1024"], "pub")
        self.cluster_sync(S3)
        self.stamp("s3 done")

    def ksplit_exchange(self, accKeep, accSend, scratch):
        a = self.a
        a.e(f"s_lshl_b32 s{s_t0}, s{s_w}, 12")
        a.e(f"s_add_u32 s{s_t0}, s{s_t0}, {scratch}")
        a.e(f"v_add_u32 v{v_tmp}, s{s_t0}, v{v_l16}")
        a.e(f"v_xor_b32 v{v_tmp + 1}, 8192, v{v_tmp}")
        for i in range(4):
            a.ds(f"ds_write_b128 v{v_tmp}, {vr(accSend + 4 * i, 4)} offset:{1024 * i}")
        a.wait_lg0()
        a.e("s_barrier")
        for i in range(4):
            a.ds(f"ds_read_b128 {vr(accSend + 4 * i, 4)}, v{v_tmp + 1} offset:{1024 * i}")
        a.wait_lg0()
        for r in range(16):
            a.e(f"v_add_f32 v{accKeep + r}, v{accKeep + r}, v{accSend + r}")

    def p3(self):
        a = self.a
        ops = self.load_frags([ar(4 * p, 4) for p in range(16)], OB, [(s_tb3, 32768), (s_kh, 16384)], 16, "ob")
        for f in ops:
            f()
        vk, vs = v_tr, v_tr + 1
        self.tr_base_t128(vk, vs)
        a.e(f"s_lshl_b32 s{s_t0}, s{s_kh}, 15")
        a.e(f"s_add_u32 s{s_t0}, s{s_t0}, {R[3]}")
        a.e(f"v_add_u32 v{vk}, s{s_t0}, v{vk}")
        a.e(f"v_add_u32 v{vs}, s{s_t0}, v{vs}")
        accK, accS = 32, 48
        a.e("s_waitcnt vmcnt(16)")
        a.e("s_barrier")
        blocks = [dict(acc=accK, addr=lambda p: (vk, p * 2048, p * 2048 + 1024)),
                  dict(acc=accS, addr=lambda p: (vs, p * 2048, p * 2048 + 1024))]
        self.gemm_pass(16, blocks, lambda p: ar(4 * p, 4), wait_tag=lambda p: f"ob{p}")
        self.stamp("p3 mfma done")
        a.e("s_nop 7")
        a.e("s_barrier")
        if self.stop_after >= 4:
            self.set_wq(4)
            a.e(f"s_lshl_b32 s{s_t7}, s{s_p0}, 6")
            for f in self.dma_slab("T64g", SRD_WU, R[3], 0, 512, s_t7, 64, 4, "u1"):
                f()
        self.ksplit_exchange(accK, accS, R[4])
        x = v_xres
        a.e(f"v_permlane32_swap_b32 v{x + 0}, v{x + 2}")
        a.e(f"v_permlane32_swap_b32 v{x + 1}, v{x + 3}")
        a.e(f"v_permlane32_swap_b32 v{x + 4}, v{x + 6}")
        a.e(f"v_permlane32_swap_b32 v{x + 5}, v{x + 7}")
        for i in range(8):
            a.e(f"v_lshlrev_b32 v{64 + 2 * i}, 16, v{x + i}")
            a.e(f"v_and_b32 v{64 + 2 * i + 1}, 0xffff0000, v{x + i}")
        for r in range(16):
            a.e(f"v_add_f32 v{accK + r}, v{accK + r}, v{64 + r}")
        for r in range(16):
            a.e(f"v_accvgpr_write_b32 a{128 + r}, v{accK + r}")
        a.e(f"v_add_f32 v64, v{accK}, v{accK + 1}")
        a.e(f"v_mul_f32 v65, v{accK}, v{accK}")
        a.e(f"v_fmac_f32 v65, v{accK + 1}, v{accK + 1}")
        for r in range(2, 16):
            a.e(f"v_add_f32 v64, v64, v{accK + r}")
            a.e(f"v_fmac_f32 v65, v{accK + r}, v{accK + r}")
        a.e("v_mov_b32 v66, v64")
        a.e("v_mov_b32 v67, v65")
        a.e("s_nop 0")
        a.e("v_permlane32_swap_b32 v64, v66")
        a.e("v_permlane32_swap_b32 v65, v67")
        a.e("s_nop 0")
        a.e("v_add_f32 v64, v64, v66")
        a.e("v_add_f32 v65, v65, v67")
        a.e(f"v_and_b32 v66, 31, v{v_lane}")
        a.e("v_lshlrev_b32 v66, 7, v66")
        a.e(f"s_lshl_b32 s{s_t3}, s{s_tb3}, 12")
        a.e(f"s_lshl_b32 s{s_t4}, s{s_fb}, 3")
        a.e(f"s_add_u32 s{s_t4}, s{s_t4}, s{s_t3}")
        a.e(f"s_add_u32 s{s_t4}, s{s_t4}, {ST}")
        a.e("s_mov_b32 exec_hi, 0")
        self.stores_mode([f"buffer_store_dwordx2 v[64:65], v66, {sr(SRD_WS, 4)}, s{s_t4} offen"], "pub")
        a.e("s_mov_b64 exec, -1")
        a.e("s_barrier")

        def win():
            a.e(f"s_lshl_b32 s{s_t7}, s{s_p0}, 6")
            for f in self.dma_slab("T64g", SRD_WG, R[4], 0, 512, s_t7, 128, 3, "g2"):
                f()
        self.cluster_sync(S4A, win if self.stop_after >= 4 else None)
        self.stamp("s4a done")
        a.e(f"v_and_b32 v66, 31, v{v_lane}")
        a.e("v_lshlrev_b32 v66, 7, v66")
        a.e(f"v_lshrrev_b32 v67, 5, v{v_lane}")
        a.e("v_lshl_add_u32 v66, v67, 6, v66")
        a.e(f"s_lshl_b32 s{s_t3}, s{s_tb3}, 12")
        a.e(f"s_add_u32 s{s_t3}, s{s_t3}, {ST}")
        for i in range(4):
            off = f" offset:{16 * i}" if i else ""
            a.vmem(f"buffer_load_dwordx4 {vr(68 + 4 * i, 4)}, v66, {sr(SRD_WS, 4)}, s{s_t3} offen{off} sc1", "st")
        a.wait_vm("st")
        for k in (70, 72, 74, 76, 78, 80, 82):
            a.e(f"v_add_f32 v68, v68, v{k}")
            a.e(f"v_add_f32 v69, v69, v{k + 1}")
        a.e("v_mov_b32 v70, v68")
        a.e("v_mov_b32 v71, v69")
        a.e("s_nop 0")
        a.e("v_permlane32_swap_b32 v68, v70")
        a.e("v_permlane32_swap_b32 v69, v71")
        a.e("s_nop 0")
        a.e("v_add_f32 v68, v68, v70")
        a.e("v_add_f32 v69, v69, v71")
        a.e("v_mov_b32 v72, 0x3b000000")
        a.e("v_mul_f32 v68, v68, v72")
        a.e("v_mul_f32 v69, v69, v72")
        a.e("v_fma_f32 v69, -v68, v68, v69")
        a.e("v_max_f32 v69, 0, v69")
        a.e("v_add_f32 v69, 0x3727c5ac, v69")
        a.e("v_rsq_f32 v69, v69")
        a.e("s_nop 0")
        a.e("v_mul_f32 v70, v68, v69")
        a.e("v_sub_f32 v70, 0, v70")
        for r in range(16):
            a.e(f"v_fma_f32 v{accK + r}, v{accK + r}, v69, v70")
        for i in range(8):
            a.e(f"v_cvt_pk_bf16_f32 v{64 + i}, v{accK + 2 * i}, v{accK + 2 * i + 1}")
        a.e(f"s_lshl_b32 s{s_t3}, s{s_tb3}, 15")
        a.e(f"s_lshl_b32 s{s_t4}, s{s_fb}, 11")
        a.e(f"s_add_u32 s{s_t3}, s{s_t3}, s{s_t4}")
        a.e(f"s_add_u32 s{s_t3}, s{s_t3}, {HN}")
        self.stores_mode([f"buffer_store_dwordx4 v[64:67], v{v_l16}, {sr(SRD_WS, 4)}, s{s_t3} offen",
                          f"buffer_store_dwordx4 v[68:71], v{v_l16}, {sr(SRD_WS, 4)}, s{s_t3} offen offset:1024"], "pub")
        self.cluster_sync(S4B)
        self.stamp("s4b done")

    def gelu_ops(self, accG, accU, tmp, pk):
        a = self.a
        ops = []
        K0, K1 = 28, 29
        for r in range(16):
            g, u = accG + r, accU + r
            t = tmp + (r % 4) * 2
            ops.append(lambda g=g, t=t: a.e(f"v_mul_f32 v{t}, v{g}, v{g}"))
            ops.append(lambda t=t: a.e(f"v_fma_f32 v{t}, v{t}, v{K1}, v{K0}"))
            ops.append(lambda g=g, t=t: a.e(f"v_mul_f32 v{t}, v{t}, v{g}"))
            ops.append(lambda t=t: a.e(f"v_exp_f32 v{t}, v{t}"))
            ops.append(lambda g=g, u=u: a.e(f"v_mul_f32 v{u}, v{g}, v{u}"))
            ops.append(lambda t=t: a.e(f"v_add_f32 v{t}, 1.0, v{t}"))
            ops.append(lambda t=t: a.e(f"v_rcp_f32 v{t}, v{t}"))
            ops.append(lambda: None)
            if r & 1:
                pass
            ops.append(lambda u=u, t=t: a.e(f"v_mul_f32 v{u}, v{u}, v{t}"))
            if r & 1:
                ops.append(lambda u=u, r=r: a.e(f"v_cvt_pk_bf16_f32 v{pk + r // 2}, v{u - 1}, v{u}"))
        return ops

    def p4(self):
        a = self.a
        ops = self.load_frags([ar(4 * p, 4) for p in range(32)], HN, [(s_tb, 32768)], 32, "hb")
        for f in ops:
            f()
        self.tr_base_t64(v_tr, False)
        a.e(f"v_add_u32 v{v_tr + 1}, 65536, v{v_tr}")
        a.e(f"v_add_u32 v{v_tr + 2}, 131072, v{v_tr}")
        import struct, math
        k0 = -2.0 * math.sqrt(2.0 / math.pi) * math.log2(math.e)
        k1 = k0 * 0.044715
        a.e(f"v_mov_b32 v28, {struct.unpack('<I', struct.pack('<f', k0))[0]:#x}")
        a.e(f"v_mov_b32 v29, {struct.unpack('<I', struct.pack('<f', k1))[0]:#x}")

        def addr(region):
            base = R[region]
            reg = v_tr + base // 65536
            o = base % 65536
            return lambda p: (reg, o + p * 1024, o + p * 1024 + 512)

        regG = [0, 2, 4]
        regU = [1, 3, 0]
        acc = [(32, 48), (64, 80)]
        pk = 136
        prev = None
        a.e("s_waitcnt vmcnt(32)")
        a.e("s_barrier")
        self.stamp("p4 start")
        for ps in range(3):
            G, U = acc[ps & 1]
            fill = []
            if ps >= 1:
                pG, pU = acc[(ps - 1) & 1]
                fill += self.gelu_ops(pG, pU, 120, pk)
                fill.append(lambda ps=ps: self.act_store(ps - 1, pk))
            dma = []
            if ps == 1:
                dma.append(lambda: (self.set_wq(4), a.e(f"s_lshl_b32 s{s_t7}, s{s_p0}, 6")))
                dma += self.dma_slab("T64g", SRD_WU, R[0], 0, 512, s_t7, 128, 4, "u2")
                if self.stop_after >= 5:
                    dma.append(lambda: a.e(f"s_lshl_b32 s{s_t7}, s{s_cs}, 7"))
                    dma += self.dma_slab("T128", SRD_WD, R[1], 0, 256, s_t7, 0, 4, "wd0")
            if ps == 2 and self.stop_after >= 5:
                dma.append(lambda: (self.set_wq(4), a.e(f"s_lshl_b32 s{s_t7}, s{s_cs}, 7")))
                dma += self.dma_slab("T128", SRD_WD, R[2], 688, 256, s_t7, 0, 4, "wd1")
                dma += self.dma_slab("T128", SRD_WD, R[3], 256, 256, s_t7, 0, 4, "wd2")
            fillers = dma + fill
            blocks = [dict(acc=G, addr=addr(regG[ps])), dict(acc=U, addr=addr(regU[ps]))]
            if ps >= 1:
                a.e("s_nop 7")
            self.gemm_pass(32, blocks, lambda p: ar(4 * p, 4), fillers=fillers,
                           wait_tag=(lambda p: f"hb{p}") if ps == 0 else None, abuf=96)
            self.stamp(f"p4 pass{ps} done")
            if ps == 1:
                a.wait_vm("u2")
            a.e("s_barrier")
        a.e("s_nop 7")
        a.e("s_nop 3")
        G, U = acc[0]
        for f in self.gelu_ops(G, U, 120, pk):
            f()
        self.act_store(2, pk)

        def win():
            a.e(f"s_lshl_b32 s{s_t7}, s{s_cs}, 7")
            for f in self.dma_slab("T128", SRD_WD, R[4], 688 + 256, 256, s_t7, 0, 3, "wd3"):
                f()
            for f in self.dma_slab("T128", SRD_WD, R[0], 512, 128, s_t7, 0, 3, "wd4"):
                f()
            for f in self.dma_slab("T128", SRD_WD, R[0] + 16384, 688 + 512, 128, s_t7, 0, 3, "wd5"):
                f()
        self.cluster_sync(S5, win if self.stop_after >= 5 else None)
        self.stamp("s5 done")

    def act_store(self, ps, pk):
        a = self.a
        a.e(f"s_mul_i32 s{s_t3}, s{s_tb}, {86 * 1024}")
        a.e(f"s_lshl_b32 s{s_t4}, s{s_p0}, 11")
        a.e(f"s_add_u32 s{s_t3}, s{s_t3}, s{s_t4}")
        a.e(f"s_add_u32 s{s_t3}, s{s_t3}, {ACT + ps * 2048}")
        self.stores_mode([f"buffer_store_dwordx4 {vr(pk, 4)}, v{v_l16}, {sr(SRD_WS, 4)}, s{s_t3} offen",
                          f"buffer_store_dwordx4 {vr(pk + 4, 4)}, v{v_l16}, {sr(SRD_WS, 4)}, s{s_t3} offen offset:1024"], "pub")

    def p5(self):
        a = self.a

        def breg(p):
            return ar(4 * p, 4) if p < 32 else ar(144 + 4 * (p - 32), 4)
        ops = self.load_frags([breg(p) for p in range(43)], ACT, [(s_tb3, 86 * 1024), (s_kh, 43 * 1024)], 43, "ab")
        for f in ops:
            f()
        vk, vs = v_tr, v_tr + 1
        self.tr_base_t128(vk, vs)
        a.e(f"s_lshl_b32 s{s_t0}, s{s_kh}, 14")
        a.e(f"v_add_u32 v{v_tr + 4}, s{s_t0}, v{vk}")
        a.e(f"v_add_u32 v{v_tr + 5}, s{s_t0}, v{vs}")
        a.e(f"s_lshl_b32 s{s_t0}, s{s_kh}, 15")
        a.e(f"v_add_u32 v{vk}, s{s_t0}, v{vk}")
        a.e(f"v_add_u32 v{vs}, s{s_t0}, v{vs}")
        a.e(f"v_add_u32 v{v_tr + 2}, 65536, v{vk}")
        a.e(f"v_add_u32 v{v_tr + 3}, 65536, v{vs}")

        def addr(which):
            def f(p):
                if p < 16:
                    o = R[1] + p * 2048
                    return (v_tr + which, o, o + 1024)
                if p < 32:
                    o = R[3] - 65536 + (p - 16) * 2048
                    return (v_tr + 2 + which, o, o + 1024)
                if p < 40:
                    o = (p - 32) * 2048
                    return (v_tr + 4 + which, o, o + 1024)
                o = R[1] + (p - 40) * 2048
                return (v_tr + which, o, o + 1024)
            return f
        accK, accS = 32, 48
        a.e("s_waitcnt vmcnt(43)")
        a.e("s_barrier")
        self.stamp("p5 start")

        def hook(p, when):
            if p == 18:
                a.e("s_barrier")
                self.set_wq(4)
                a.e(f"s_lshl_b32 s{s_t7}, s{s_cs}, 7")
                for f in self.dma_slab("T128", SRD_WD, R[1], 640, 48, s_t7, 0, 4, "wd6"):
                    f()
                for f in self.dma_slab("T128", SRD_WD, R[2], 688 + 640, 48, s_t7, 0, 4, "wd7"):
                    f()
            if p == 40:
                a.wait_vm("wd7")
                a.e("s_barrier")
        blocks = [dict(acc=accK, addr=addr(0)), dict(acc=accS, addr=addr(1))]
        self.gemm_pass(43, blocks, breg, wait_tag=lambda p: f"ab{p}", step_hook=hook)
        self.stamp("p5 mfma done")
        a.e("s_nop 7")
        a.e("s_barrier")
        self.ksplit_exchange(accK, accS, R[4])
        for r in range(16):
            a.e(f"v_accvgpr_read_b32 v{64 + r}, a{128 + r}")
        for r in range(16):
            a.e(f"v_add_f32 v{accK + r}, v{accK + r}, v{64 + r}")
        for i in range(8):
            a.e(f"v_cvt_pk_bf16_f32 v{64 + i}, v{accK + 2 * i}, v{accK + 2 * i + 1}")
        a.e("s_nop 0")
        a.e("v_permlane32_swap_b32 v64, v66")
        a.e("v_permlane32_swap_b32 v65, v67")
        a.e("v_permlane32_swap_b32 v68, v70")
        a.e("v_permlane32_swap_b32 v69, v71")
        a.e(f"v_and_b32 v{v_tmp}, 31, v{v_lane}")
        a.e(f"v_lshrrev_b32 v{v_tmp + 1}, 5, v{v_lane}")
        a.e(f"v_lshlrev_b32 v{v_tmp}, 10, v{v_tmp}")
        a.e(f"v_lshl_add_u32 v{v_tmp + 2}, v{v_tmp + 1}, 4, v{v_tmp}")
        a.e(f"s_lshl_b32 s{s_t1}, s{s_tb3}, 15")
        a.e(f"s_lshl_b32 s{s_t2}, s{s_fb}, 6")
        a.e(f"s_add_u32 s{s_t1}, s{s_t1}, s{s_t2}")
        a.vmem(f"buffer_store_dwordx4 v[64:67], v{v_tmp + 2}, {sr(SRD_OUT, 4)}, s{s_t1} offen", "out")
        a.vmem(f"buffer_store_dwordx4 v[68:71], v{v_tmp + 2}, {sr(SRD_OUT, 4)}, s{s_t1} offen offset:32", "out")
        self.stamp("p5 done")

    def build(self, code_q_instr=8):
        self.code_q_instr = code_q_instr
        self.prologue()
        self.p0()
        if self.stop_after >= 1:
            self.p1()
        if self.stop_after >= 2:
            self.p2()
        if self.stop_after >= 3:
            self.p3()
        if self.stop_after >= 4:
            self.p4()
        if self.stop_after >= 5:
            self.p5()
        self.finish()
        self.a.finalize(verbose=True)
        return self.a.text()


HEADER = """; Kernarg layout (80 bytes): A_x, A_wqkv, A_wo, B_x, B_w_gate, B_w_up, B_w_down, d_out, d_debug, d_ws
; @launch grid=(256,1,1) block=(256,1,1) lds=163840
.amdgcn_target "amdgcn-amd-amdhsa--gfx950"
.set CODE_Q, {code_q}
.text
.globl {k}
.p2align 8
.type {k},@function
{k}:
"""

FOOTER = """.section .rodata,"a"
.p2align 6
.amdhsa_kernel {k}
  .amdhsa_next_free_vgpr 512
  .amdhsa_next_free_sgpr 102
  .amdhsa_accum_offset 256
  .amdhsa_group_segment_fixed_size 0
  .amdhsa_kernarg_size 80
  .amdhsa_user_sgpr_count 2
  .amdhsa_user_sgpr_kernarg_segment_ptr 1
  .amdhsa_system_sgpr_workgroup_id_x 1
.end_amdhsa_kernel
"""


def generate(stop_after=99, profile=False, code_q_instr=9):
    g = Gen(stop_after, profile)
    body = g.build(code_q_instr)
    src = HEADER.format(k=KNAME, code_q=code_q_instr * 1024) + body + FOOTER.format(k=KNAME)
    return src, g


if __name__ == "__main__":
    import argparse
    ap = argparse.ArgumentParser()
    ap.add_argument("-o", default="sequential_preLN__sliding_block__geglu_ffn__prompt.s")
    ap.add_argument("--stop", type=int, default=99)
    ap.add_argument("--profile", action="store_true")
    args = ap.parse_args()
    src, g = generate(args.stop, args.profile)
    open(args.o, "w").write(src)
    print("wrote", args.o, len(src), "bytes;", len(g.a.out), "lines")
    if args.profile:
        print("stamps:", list(enumerate(g.stamp_names)))
```

```python
import sys
import os
sys.path.insert(0, os.path.dirname(__file__))
from asmdsl import Asm, vr, ar, sr

KNAME = "sequential_preLN__sliding_block__geglu_ffn__prompt_kernel"

XNA = 0x0000000
XNB = 0x0200000
KB = 0x0400000
VB = 0x0600000
OB = 0x0800000
HN = 0x0A00000
ACT = 0x0C00000
ST = 0x1200000
FLG = 0x1300000
FLS = 0x1340000
FL2 = 0x1380000
PROF = 0x1400000
WS_BYTES = 0x10000000

R = [i * 32768 for i in range(5)]
LDS_BYTES = 163840
SCR0 = LDS_BYTES - 8192
LG0, LU0, LG1, LU1A, LU1B, LU1C = 0, 49152, 98304, 147456, 0, 49152
WD_X = (0, 6, 24576, 12288)
WD_Y = (6, 9, 58368, 18432)
WD_Z = (15, 16, 98304, 32768)
WD_W = (31, 6, 0, 12288)
WD_X2 = (37, 6, 24576, 12288)

S1, S3, S4A, S4B, S5 = 0, 1, 2, 3, 4

POLL_LIMIT = 400000
FAST_TRIES = 24

SRD_X, SRD_WQKV, SRD_WO, SRD_WG, SRD_WU, SRD_WD, SRD_OUT, SRD_DBG, SRD_WS = 8, 12, 16, 20, 24, 28, 32, 36, 40
s_rb, s_j, s_w, s_tb, s_nonce, s_mode, s_xcc, s_tb3, s_kh, s_cs, s_fb = 44, 45, 46, 47, 48, 49, 50, 51, 52, 53, 54
s_t0, s_t1, s_t2, s_t3, s_t4, s_t5, s_t6, s_t7 = 56, 57, 58, 59, 60, 61, 62, 63
s_wq = 64
s_dm0, s_dso = 65, 66
s_cnt = 67
s_p0 = 68
s_err = 69
s_vmask = 70
s_dir, s_sgn, s_stm, s_sts = 82, 83, 84, 85
s_cq, s_c128, s_cg = 86, 87, 88
s_fbase, s_fcur = 89, 90
s_tm = 100

v_tid, v_lane, v_l16 = 0, 1, 2
v_dq, v_dg, v_d128 = 3, 4, 5
v_dg1, v_dg2 = 24, 25
v_tr = 6
v_tr2 = 22
v_tmp = 12
v_xres = 192
v_bold, v_bdiag, v_pmask = 200, 216, 232
v_vp8 = 240
v_prof = 27

NEG_BITS = 0xF149F2CA


class Gen:
    def __init__(self, stop_after=99, profile=False, opt=None):
        self.a = Asm()
        self.opt = opt or {}
        self.stop_after = stop_after
        self.profile = profile
        self.nstamp = 0

    def stamp(self, name=""):
        if not self.profile:
            return
        a = self.a
        assert self.nstamp < 64
        a.e(f"s_memtime {sr(s_tm, 2)}")
        a.wait_lg0()
        a.e(f"v_writelane_b32 v{v_prof}, s{s_tm}, {self.nstamp}")
        a.c(f"stamp {self.nstamp}: {name}")
        self.stamp_names = getattr(self, "stamp_names", []) + [name]
        self.nstamp += 1

    def dma(self, kind, srd, lds_base, row0, nrows, col_sreg, nwaves, tag, col_imm=0):
        a = self.a
        rs, rpg, subs = {"q64": (3072, 16, [(v_dq, 0)]), "t128": (1024, 8, [(v_d128, 0)]),
                         "g192": (2752, 16, [(v_dg, 0), (v_dg1, 1024), (v_dg2, 2048)])}[kind]
        lstride = 1024 * len(subs)
        ngr = nrows // rpg
        assert nrows % rpg == 0
        per = -(-ngr // nwaves)

        def setup():
            a.e(f"s_mul_i32 s{s_t0}, s{s_wq}, {per}")
            if per * nwaves != ngr:
                a.e(f"s_min_u32 s{s_t0}, s{s_t0}, {ngr - per}")
            if per > 1:
                a.e(f"s_mul_i32 s{s_t1}, s{s_dir}, {per - 1}")
                a.e(f"s_add_u32 s{s_t0}, s{s_t0}, s{s_t1}")
                a.e(f"s_mul_i32 s{s_stm}, s{s_sgn}, {lstride}")
                a.e(f"s_mul_i32 s{s_sts}, s{s_sgn}, {rpg * rs}")
            a.e(f"s_mul_i32 s{s_dm0}, s{s_t0}, {lstride}")
            if lds_base:
                a.e(f"s_add_u32 s{s_dm0}, s{s_dm0}, {lds_base}")
            a.e(f"s_mul_i32 s{s_dso}, s{s_t0}, {rpg * rs}")
            a.e(f"s_add_u32 s{s_dso}, s{s_dso}, s{col_sreg}")
            base = row0 * rs + col_imm
            if base:
                a.e(f"s_add_u32 s{s_dso}, s{s_dso}, {base}")

        ops = []
        for n in range(per):
            for k, (voff, loff) in enumerate(subs):
                def f(n=n, k=k, voff=voff, loff=loff):
                    if n == 0 and k == 0:
                        setup()
                    if loff:
                        a.e(f"s_add_u32 m0, s{s_dm0}, {loff}")
                    else:
                        a.e(f"s_mov_b32 m0, s{s_dm0}")
                    adv = (k == len(subs) - 1) and n != per - 1
                    if adv:
                        a.e(f"s_add_u32 s{s_dm0}, s{s_dm0}, s{s_stm}")
                    a.vmem(f"buffer_load_dwordx4 v{voff}, {sr(srd, 4)}, s{s_dso} offen lds", tag)
                    if adv:
                        a.e(f"s_add_u32 s{s_dso}, s{s_dso}, s{s_sts}")
                ops.append(f)
        return ops

    def set_wq(self, nwaves):
        a = self.a
        if nwaves == 3:
            a.e(f"s_sub_u32 s{s_wq}, s{s_w}, 1")
        elif nwaves == 2:
            a.e(f"s_sub_u32 s{s_wq}, s{s_w}, 2")
        else:
            a.e(f"s_mov_b32 s{s_wq}, s{s_w}")

    def err(self, code):
        pass

    def poll64(self, flag_off_sreg, nlanes_mask=None):
        a = self.a
        lp = a.newlabel("L_poll")
        dn = a.newlabel("L_polld")
        a.e(f"v_lshlrev_b32 v{v_tmp}, 3, v{v_lane}")
        a.e(f"s_mov_b32 s{s_cnt}, 0")
        a.label(lp)
        a.e(f"buffer_load_dword v{v_tmp + 1}, v{v_tmp}, {sr(SRD_WS, 4)}, s{flag_off_sreg} offen sc1")
        a.e("s_waitcnt vmcnt(0)")
        a.e(f"v_cmp_eq_u32 vcc, s{s_nonce}, v{v_tmp + 1}")
        a.e(f"s_add_u32 s{s_cnt}, s{s_cnt}, 1")
        a.e(f"s_cmp_gt_u32 s{s_cnt}, {POLL_LIMIT}")
        a.e(f"s_cbranch_scc1 {dn}")
        a.e("s_cmp_eq_u64 vcc, -1")
        a.e(f"s_cbranch_scc0 {lp}")
        a.label(dn)
        a.e(f"s_cmp_gt_u32 s{s_cnt}, {POLL_LIMIT}")
        a.e(f"s_cselect_b32 s{s_t0}, 1, 0")
        a.e(f"s_or_b32 s{s_err}, s{s_err}, s{s_t0}")

    def flag_store(self, off_sreg):
        a = self.a
        l1 = a.newlabel("L_fs")
        l2 = a.newlabel("L_fe")
        a.e(f"v_mov_b32 v{v_tmp}, s{s_nonce}")
        a.e(f"v_mov_b32 v{v_tmp + 1}, 0")
        a.e("s_mov_b64 exec, 1")
        a.e(f"s_cmp_eq_u32 s{s_mode}, 1")
        a.e(f"s_cbranch_scc0 {l1}")
        a.e(f"buffer_store_dword v{v_tmp}, v{v_tmp + 1}, {sr(SRD_WS, 4)}, s{off_sreg} offen")
        a.e(f"s_branch {l2}")
        a.label(l1)
        a.e(f"buffer_store_dword v{v_tmp}, v{v_tmp + 1}, {sr(SRD_WS, 4)}, s{off_sreg} offen sc1")
        a.label(l2)
        a.vm.append("flag")
        a.e("s_mov_b64 exec, -1")

    def stores_mode(self, lst, tag):
        a = self.a
        l1 = a.newlabel("L_ss")
        l2 = a.newlabel("L_se")
        a.e(f"s_cmp_eq_u32 s{s_mode}, 1")
        a.e(f"s_cbranch_scc0 {l1}")
        for t in lst:
            a.e(t)
        a.e(f"s_branch {l2}")
        a.label(l1)
        for t in lst:
            a.e(t + " sc1")
        a.label(l2)
        for t in lst:
            a.vm.append(tag)

    def cluster_sync(self, sid, window_dma=None):
        a = self.a
        a.wait_vm("pub")
        a.e(f"s_lshl_b32 s{s_t1}, s{s_rb}, 9")
        a.e(f"s_add_u32 s{s_t1}, s{s_t1}, {FLG + sid * 16 * 512}")
        a.e(f"s_lshl_b32 s{s_t2}, s{s_j}, 2")
        a.e(f"s_add_u32 s{s_t2}, s{s_t2}, s{s_w}")
        a.e(f"s_lshl_b32 s{s_t2}, s{s_t2}, 3")
        a.e(f"s_add_u32 s{s_t2}, s{s_t2}, s{s_t1}")
        self.flag_store(s_t2)
        lw = a.newlabel("L_w0")
        le = a.newlabel("L_we")
        a.e(f"s_cmp_eq_u32 s{s_w}, 0")
        a.e(f"s_cbranch_scc1 {lw}")
        if window_dma:
            self.set_wq(3)
            window_dma()
        a.e(f"s_branch {le}")
        a.label(lw)
        self.poll64(s_t1)
        a.label(le)
        a.e("s_barrier")

    def finish(self):
        a = self.a
        a.label("L_finish")
        a.wait_all()
        lskip = a.newlabel("L_noerr")
        a.e(f"s_cmp_eq_u32 s{s_err}, 0")
        a.e(f"s_cbranch_scc1 {lskip}")
        a.e(f"v_mov_b32 v{v_tmp}, s{s_err}")
        a.e(f"v_mov_b32 v{v_tmp + 1}, 4")
        a.e(f"buffer_store_dword v{v_tmp}, v{v_tmp + 1}, {sr(SRD_DBG, 4)}, 0 offen")
        a.label(lskip)
        if self.profile:
            a.e(f"s_lshl_b32 s{s_t0}, s2, 2")
            a.e(f"s_add_u32 s{s_t0}, s{s_t0}, s{s_w}")
            a.e(f"s_lshl_b32 s{s_t0}, s{s_t0}, 8")
            a.e(f"s_add_u32 s{s_t0}, s{s_t0}, {PROF}")
            a.e(f"v_lshlrev_b32 v{v_tmp}, 2, v{v_lane}")
            a.e(f"buffer_store_dword v{v_prof}, v{v_tmp}, {sr(SRD_WS, 4)}, s{s_t0} offen")
        a.e("s_waitcnt vmcnt(0)")
        a.label("L_exit")
        a.e("s_endpgm")

    def prologue(self):
        a = self.a
        a.e("s_cmp_ge_u32 s2, 256")
        a.e("s_cbranch_scc1 L_exit")
        a.e("s_load_dwordx16 s[64:79], s[0:1], 0")
        a.e("s_load_dwordx4 s[56:59], s[0:1], 64")
        if self.profile:
            a.e(f"s_memtime {sr(s_tm, 2)}")
        a.e(f"s_getreg_b32 s{s_xcc}, hwreg(HW_REG_XCC_ID)")
        a.e(f"s_and_b32 s{s_xcc}, s{s_xcc}, 15")
        a.e(f"s_and_b32 s{s_rb}, s2, 7")
        a.e(f"s_lshl_b32 s{s_rb}, s{s_rb}, 1")
        a.e(f"s_bfe_u32 s{s_j}, s2, 0x10003")
        a.e(f"s_add_u32 s{s_rb}, s{s_rb}, s{s_j}")
        a.e(f"s_lshr_b32 s{s_j}, s2, 4")
        a.e(f"v_lshrrev_b32 v{v_tmp}, 6, v0")
        a.e(f"v_and_b32 v{v_lane}, 63, v0")
        a.e(f"v_readfirstlane_b32 s{s_w}, v{v_tmp}")
        a.e(f"v_lshlrev_b32 v{v_l16}, 4, v{v_lane}")
        a.e(f"s_mov_b32 s{s_mode}, 0")
        a.e(f"s_lshl_b32 s{s_tb}, s{s_rb}, 2")
        a.e(f"s_add_u32 s{s_tb}, s{s_tb}, s{s_w}")
        a.e(f"s_and_b32 s{s_cs}, s{s_j}, 7")
        a.e(f"s_lshr_b32 s{s_kh}, s{s_w}, 1")
        a.e(f"s_lshr_b32 s{s_tb3}, s{s_j}, 3")
        a.e(f"s_lshl_b32 s{s_tb3}, s{s_tb3}, 1")
        a.e(f"s_and_b32 s{s_fb}, s{s_w}, 1")
        a.e(f"s_add_u32 s{s_tb3}, s{s_tb3}, s{s_fb}")
        a.e(f"s_lshl_b32 s{s_fb}, s{s_rb}, 2")
        a.e(f"s_add_u32 s{s_tb3}, s{s_tb3}, s{s_fb}")
        a.e(f"s_lshl_b32 s{s_fb}, s{s_cs}, 1")
        a.e(f"s_add_u32 s{s_fb}, s{s_fb}, s{s_kh}")
        a.e(f"s_mul_i32 s{s_p0 + 12}, s{s_j}, 43")
        a.e(f"v_lshrrev_b32 v{v_tmp}, 2, v{v_lane}")
        a.e(f"v_and_b32 v{v_tmp + 1}, 3, v{v_lane}")
        a.e(f"v_lshlrev_b32 v{v_tmp + 1}, 4, v{v_tmp + 1}")
        a.e(f"v_mul_u32_u24 v{v_dq}, 3072, v{v_tmp}")
        a.e(f"v_add_u32 v{v_dq}, v{v_dq}, v{v_tmp + 1}")
        for i, dst in enumerate((v_dg, v_dg1, v_dg2)):
            a.e(f"v_add_u32 v{v_tmp}, {64 * i}, v{v_lane}")
            a.e(f"v_mul_u32_u24 v{v_tmp + 1}, 43691, v{v_tmp}")
            a.e(f"v_lshrrev_b32 v{v_tmp + 1}, 19, v{v_tmp + 1}")
            a.e(f"v_mul_u32_u24 v{v_tmp + 2}, 12, v{v_tmp + 1}")
            a.e(f"v_sub_u32 v{v_tmp + 2}, v{v_tmp}, v{v_tmp + 2}")
            a.e(f"v_mul_u32_u24 v{v_tmp + 1}, 2752, v{v_tmp + 1}")
            a.e(f"v_lshl_add_u32 v{dst}, v{v_tmp + 2}, 4, v{v_tmp + 1}")
        a.e(f"v_lshrrev_b32 v{v_tmp}, 3, v{v_lane}")
        a.e(f"v_and_b32 v{v_tmp + 1}, 7, v{v_lane}")
        a.e(f"v_lshlrev_b32 v{v_tmp + 2}, 1, v{v_tmp}")
        a.e(f"v_and_b32 v{v_tmp + 2}, 4, v{v_tmp + 2}")
        a.e(f"v_xor_b32 v{v_tmp + 1}, v{v_tmp + 1}, v{v_tmp + 2}")
        a.e(f"v_lshlrev_b32 v{v_tmp + 1}, 4, v{v_tmp + 1}")
        a.e(f"v_lshl_add_u32 v{v_d128}, v{v_tmp}, 10, v{v_tmp + 1}")
        a.e("s_waitcnt lgkmcnt(0)")
        if self.profile:
            a.e(f"v_writelane_b32 v{v_prof}, s{s_tm}, 0")
            self.nstamp = 1
            self.stamp_names = ["start"]
        for srd, lo, nbytes in ((SRD_X, 64, 2048 * 1024), (SRD_WQKV, 66, 512 * 3072), (SRD_WO, 68, 512 * 1024),
                                (SRD_WG, 72, 512 * 2752), (SRD_WU, 74, 512 * 2752), (SRD_WD, 76, 1376 * 1024),
                                (SRD_OUT, 78, 2048 * 1024), (SRD_DBG, 56, 256), (SRD_WS, 58, WS_BYTES)):
            a.e(f"s_mov_b32 s{srd}, s{lo}")
            a.e(f"s_and_b32 s{srd + 1}, s{lo + 1}, 0xffff")
            a.e(f"s_mov_b32 s{srd + 2}, {nbytes}")
            a.e(f"s_mov_b32 s{srd + 3}, 0x20000")
        a.e(f"s_lshr_b32 s{s_p0}, s80, 4")
        a.e(f"s_mov_b32 s{s_err}, 0")
        a.e(f"s_mov_b32 s{s_vmask}, 0xffff")
        a.e(f"s_mov_b32 s{s_vmask + 1}, 0xffff")
        a.e(f"s_bfe_u32 s{s_dir}, s2, 0x10003")
        a.e(f"s_lshl_b32 s{s_sgn}, s{s_dir}, 1")
        a.e(f"s_sub_u32 s{s_sgn}, 1, s{s_sgn}")
        a.e(f"s_lshl_b32 s{s_cq}, s{s_j}, 6")
        a.e(f"s_lshl_b32 s{s_c128}, s{s_cs}, 7")
        a.e(f"s_lshl_b32 s{s_cg}, s{s_p0}, 6")

    def p0(self):
        a = self.a
        ldma = a.newlabel("L_p0dma")
        lj = a.newlabel("L_p0j")
        a.e(f"s_cmp_ge_u32 s{s_w}, 2")
        a.e(f"s_cbranch_scc1 {ldma}")
        a.e(f"s_lshl_b32 s{s_t0}, s{s_rb}, 7")
        a.e(f"s_lshl_b32 s{s_t1}, s{s_j}, 3")
        a.e(f"s_add_u32 s{s_t0}, s{s_t0}, s{s_t1}")
        a.e(f"s_lshl_b32 s{s_t1}, s{s_w}, 2")
        a.e(f"s_add_u32 s{s_t0}, s{s_t0}, s{s_t1}")
        a.e(f"s_lshl_b32 s{s_t0}, s{s_t0}, 10")
        for i in range(4):
            off = f" offset:{1024 * i}" if i else ""
            a.e(f"buffer_load_dwordx4 {vr(32 + 4 * i, 4)}, v{v_l16}, {sr(SRD_X, 4)}, s{s_t0} offen{off}")
        lnp = a.newlabel("L_nonp")
        a.e("s_cmp_eq_u32 s2, 0")
        a.e(f"s_cbranch_scc0 {lnp}")
        a.e(f"s_cmp_eq_u32 s{s_w}, 0")
        a.e(f"s_cbranch_scc0 {lnp}")
        a.e(f"s_memrealtime {sr(s_t2, 2)}")
        a.e("s_waitcnt lgkmcnt(0)")
        a.e(f"s_or_b32 s{s_t2}, s{s_t2}, 1")
        a.e(f"v_mov_b32 v{v_tmp + 4}, s{s_t2}")
        a.e(f"v_mov_b32 v{v_tmp + 5}, 0")
        a.e("s_mov_b64 exec, 1")
        a.e(f"buffer_store_dword v{v_tmp + 4}, v{v_tmp + 5}, {sr(SRD_DBG, 4)}, 0 offen sc1")
        a.e("s_mov_b64 exec, -1")
        a.label(lnp)
        lnc = a.newlabel("L_nocp")
        a.e(f"s_cmp_eq_u32 s{s_w}, 1")
        a.e(f"s_cbranch_scc0 {lnc}")
        a.e(f"s_getpc_b64 {sr(s_t2, 2)}")
        a.label("L_pcref")
        a.e(f"s_bfe_u32 s{s_t4}, s2, 0x20003")
        a.e(f"s_mul_i32 s{s_t4}, s{s_t4}, CODE_Q")
        a.e(f"v_add_u32 v{v_tmp + 6}, s{s_t4}, v{v_l16}")
        for i in range(self.code_q_instr):
            a.e(f"global_load_dwordx4 v[28:31], v{v_tmp + 6}, {sr(s_t2, 2)}")
            a.e(f"v_add_u32 v{v_tmp + 6}, 1024, v{v_tmp + 6}")
        a.label(lnc)
        self.consts()
        l0 = a.newlabel("L_xw0")
        l1 = a.newlabel("L_xw1")
        a.e(f"s_cmp_eq_u32 s{s_w}, 0")
        a.e(f"s_cbranch_scc1 {l0}")
        a.e(f"s_waitcnt vmcnt({self.code_q_instr})")
        a.e(f"s_branch {l1}")
        a.label(l0)
        a.e("s_waitcnt vmcnt(0)")
        a.label(l1)
        self.stamp_div("x arrived", 44)
        self.ln_rows(32, 36, 56, 60)
        self.ln_rows(40 + 8, 44 + 8, 64 + 8, 68 + 8, pre_move=(40, 44))
        a.e(f"s_lshl_b32 s{s_t0}, s{s_w}, 12")
        a.e(f"s_add_u32 s{s_t0}, s{s_t0}, {SCR0}")
        a.e(f"v_add_u32 v{v_tmp}, s{s_t0}, v{v_l16}")
        a.e(f"ds_write_b128 v{v_tmp}, v[112:115]")
        a.e(f"ds_write_b128 v{v_tmp}, v[116:119] offset:1024")
        a.e(f"ds_write_b128 v{v_tmp}, v[120:123] offset:2048")
        a.e(f"ds_write_b128 v{v_tmp}, v[124:127] offset:3072")
        ln = a.newlabel("L_nn")
        a.e(f"s_cmp_eq_u32 s{s_w}, 0")
        a.e(f"s_cbranch_scc0 {ln}")
        lp = a.newlabel("L_np")
        ld = a.newlabel("L_npd")
        a.e(f"v_mov_b32 v{v_tmp + 1}, 0")
        a.e(f"s_mov_b32 s{s_cnt}, 0")
        a.label(lp)
        a.e(f"buffer_load_dword v{v_tmp + 2}, v{v_tmp + 1}, {sr(SRD_DBG, 4)}, 0 offen sc1")
        a.e("s_waitcnt vmcnt(0)")
        a.e(f"v_readfirstlane_b32 s{s_nonce}, v{v_tmp + 2}")
        a.e(f"s_add_u32 s{s_cnt}, s{s_cnt}, 1")
        a.e(f"s_cmp_gt_u32 s{s_cnt}, {POLL_LIMIT}")
        a.e(f"s_cbranch_scc1 {ld}")
        a.e(f"s_cmp_eq_u32 s{s_nonce}, 0")
        a.e(f"s_cbranch_scc1 {lp}")
        a.label(ld)
        a.e(f"s_cmp_gt_u32 s{s_cnt}, {POLL_LIMIT}")
        a.e(f"s_cselect_b32 s{s_t0}, 1, 0")
        a.e(f"s_or_b32 s{s_err}, s{s_err}, s{s_t0}")
        a.label(ln)
        a.e(f"s_branch {lj}")
        a.label(ldma)
        self.set_wq(2)
        for half in range(2):
            for f in self.dma("q64", SRD_WQKV, R[0] + half * 16384, half * 256, 256, s_cq, 2, "w1", col_imm=1024):
                f()
            for f in self.dma("q64", SRD_WQKV, R[1] + half * 16384, half * 256, 256, s_cq, 2, "w1", col_imm=2048):
                f()
        self.consts()
        a.label(lj)
        a.e("s_waitcnt lgkmcnt(0)")
        a.e("s_barrier")
        self.stamp("p0 ln done")
        le = a.newlabel("L_s1e")
        a.e(f"s_cmp_eq_u32 s{s_w}, 0")
        a.e(f"s_cbranch_scc0 {le}")
        a.e(f"v_and_b32 v{v_tmp}, 7, v{v_lane}")
        a.e(f"v_lshrrev_b32 v{v_tmp + 1}, 3, v{v_lane}")
        a.e(f"v_lshlrev_b32 v{v_tmp + 2}, 10, v{v_tmp}")
        a.e(f"v_lshl_add_u32 v{v_tmp + 2}, v{v_tmp + 1}, 4, v{v_tmp + 2}")
        a.e(f"v_add_u32 v{v_tmp + 2}, {SCR0}, v{v_tmp + 2}")
        for i in range(8):
            a.e(f"ds_read_b128 {vr(32 + 4 * i, 4)}, v{v_tmp + 2} offset:{128 * i}")
        a.e(f"v_lshlrev_b32 v{v_tmp + 3}, 9, v{v_tmp + 1}")
        a.e(f"v_lshl_add_u32 v{v_tmp + 3}, v{v_tmp}, 4, v{v_tmp + 3}")
        a.e(f"s_lshr_b32 s{s_t0}, s{s_j}, 2")
        a.e(f"s_lshl_b32 s{s_t1}, s{s_rb}, 2")
        a.e(f"s_add_u32 s{s_t0}, s{s_t0}, s{s_t1}")
        a.e(f"s_lshl_b32 s{s_t0}, s{s_t0}, 15")
        a.e(f"s_and_b32 s{s_t1}, s{s_j}, 3")
        a.e(f"s_lshl_b32 s{s_t1}, s{s_t1}, 7")
        a.e(f"s_add_u32 s{s_t0}, s{s_t0}, s{s_t1}")
        a.e("s_waitcnt lgkmcnt(0)")
        for i in range(8):
            a.e(f"s_add_u32 s{s_t1}, s{s_t0}, {XNA + i * 4096}")
            a.e(f"buffer_store_dwordx4 {vr(32 + 4 * i, 4)}, v{v_tmp + 3}, {sr(SRD_WS, 4)}, s{s_t1} offen")
        a.e("s_waitcnt vmcnt(0)")
        a.e(f"s_lshl_b32 s{s_t2}, s{s_rb}, 9")
        a.e(f"s_add_u32 s{s_t2}, s{s_t2}, {FLG + S1 * 16 * 512}")
        a.e(f"s_lshl_b32 s{s_t3}, s{s_j}, 3")
        a.e(f"s_add_u32 s{s_t3}, s{s_t3}, s{s_t2}")
        a.e(f"v_mov_b32 v{v_tmp + 4}, s{s_nonce}")
        a.e(f"v_mov_b32 v{v_tmp + 5}, s{s_xcc}")
        a.e(f"v_mov_b32 v{v_tmp + 6}, 0")
        a.e("s_mov_b64 exec, 1")
        a.e(f"buffer_store_dwordx2 {vr(v_tmp + 4, 2)}, v{v_tmp + 6}, {sr(SRD_WS, 4)}, s{s_t3} offen")
        a.e("s_mov_b64 exec, 0xffff")
        a.e(f"s_lshl_b32 s{s_t4}, s{s_rb}, 11")
        a.e(f"s_add_u32 s{s_t4}, s{s_t4}, {FLS}")
        a.e(f"v_lshlrev_b32 v{v_tmp}, 3, v{v_lane}")
        a.e(f"v_lshlrev_b32 v{v_tmp + 1}, 7, v{v_lane}")
        a.e(f"s_mov_b32 s{s_cnt}, 0")
        lp = a.newlabel("L_s1p")
        lslow = a.newlabel("L_s1s")
        lfast = a.newlabel("L_s1f")
        ldone = a.newlabel("L_s1d")
        lnopub = a.newlabel("L_s1np")
        a.label(lp)
        a.e(f"buffer_load_dwordx2 {vr(v_tmp + 8, 2)}, v{v_tmp}, {sr(SRD_WS, 4)}, s{s_t2} offen sc1")
        a.e("s_waitcnt vmcnt(0)")
        a.e(f"v_cmp_eq_u32 vcc, s{s_nonce}, v{v_tmp + 8}")
        a.e(f"v_cmp_eq_u32 {sr(s_t6, 2)}, s{s_xcc}, v{v_tmp + 9}")
        a.e(f"s_add_u32 s{s_cnt}, s{s_cnt}, 1")
        a.e("s_nop 0")
        a.e(f"s_and_b64 vcc, vcc, {sr(s_t6, 2)}")
        a.e("s_cmp_eq_u64 vcc, 0xffff")
        a.e(f"s_cbranch_scc1 {lfast}")
        a.e(f"s_cmp_lt_u32 s{s_cnt}, {FAST_TRIES}")
        a.e(f"s_cbranch_scc1 {lp}")
        a.e(f"s_cmp_eq_u32 s{s_cnt}, {FAST_TRIES}")
        a.e(f"s_cbranch_scc0 {lnopub}")
        a.e("s_mov_b64 exec, -1")
        for i in range(8):
            a.e(f"s_add_u32 s{s_t1}, s{s_t0}, {XNB + i * 4096}")
            a.e(f"buffer_store_dwordx4 {vr(32 + 4 * i, 4)}, v{v_tmp + 3}, {sr(SRD_WS, 4)}, s{s_t1} offen sc1")
        a.e("s_waitcnt vmcnt(0)")
        a.e(f"s_lshl_b32 s{s_t5}, s{s_j}, 7")
        a.e(f"s_add_u32 s{s_t5}, s{s_t5}, s{s_t4}")
        a.e("s_mov_b64 exec, 1")
        a.e(f"buffer_store_dword v{v_tmp + 4}, v{v_tmp + 6}, {sr(SRD_WS, 4)}, s{s_t5} offen sc1")
        a.e("s_mov_b64 exec, 0xffff")
        a.label(lnopub)
        a.e(f"buffer_load_dword v{v_tmp + 10}, v{v_tmp + 1}, {sr(SRD_WS, 4)}, s{s_t4} offen sc1")
        a.e("s_waitcnt vmcnt(0)")
        a.e(f"v_cmp_eq_u32 vcc, s{s_nonce}, v{v_tmp + 10}")
        a.e(f"s_cmp_gt_u32 s{s_cnt}, {POLL_LIMIT}")
        a.e(f"s_cbranch_scc1 {lslow}")
        a.e("s_cmp_eq_u64 vcc, 0xffff")
        a.e(f"s_cbranch_scc0 {lp}")
        a.label(lslow)
        a.e(f"s_mov_b32 s{s_mode}, 0")
        a.e(f"s_cmp_gt_u32 s{s_cnt}, {POLL_LIMIT}")
        a.e(f"s_cselect_b32 s{s_t0}, 1, 0")
        a.e(f"s_or_b32 s{s_err}, s{s_err}, s{s_t0}")
        a.e(f"s_branch {ldone}")
        a.label(lfast)
        a.e(f"s_mov_b32 s{s_mode}, 1")
        a.label(ldone)
        a.e("s_mov_b64 exec, -1")
        a.e(f"v_mov_b32 v{v_tmp}, s{s_nonce}")
        a.e(f"v_mov_b32 v{v_tmp + 1}, s{s_mode}")
        a.e(f"v_mov_b32 v{v_tmp + 2}, {SCR0}")
        a.e(f"ds_write_b64 v{v_tmp + 2}, {vr(v_tmp, 2)}")
        a.e("s_waitcnt lgkmcnt(0)")
        a.label(le)
        a.e("s_barrier")
        a.e(f"v_mov_b32 v{v_tmp + 2}, {SCR0}")
        a.e(f"ds_read_b64 {vr(v_tmp, 2)}, v{v_tmp + 2}")
        a.e("s_waitcnt lgkmcnt(0)")
        a.e(f"v_readfirstlane_b32 s{s_nonce}, v{v_tmp}")
        a.e(f"v_readfirstlane_b32 s{s_mode}, v{v_tmp + 1}")
        self.stamp("s1 done")

    def stamp_div(self, name, idx):
        if not self.profile:
            return
        a = self.a
        a.e(f"s_memtime {sr(s_tm, 2)}")
        a.e("s_waitcnt lgkmcnt(0)")
        a.e(f"v_writelane_b32 v{v_prof}, s{s_tm}, {idx}")
        self.div_stamps = getattr(self, "div_stamps", []) + [(idx, name)]

    def consts(self):
        a = self.a
        a.e(f"v_mov_b32 v{v_tmp}, 0x3f803f80")
        for i in range(128, 256):
            a.e(f"v_accvgpr_write_b32 a{i}, v{v_tmp}")
        for i in range(16):
            a.e(f"v_mov_b32 v{v_vp8 + i}, v{v_tmp}")
        a.e(f"v_and_b32 v{v_tmp + 1}, 31, v{v_lane}")
        a.e(f"v_lshrrev_b32 v{v_tmp + 2}, 5, v{v_lane}")
        a.e(f"v_lshlrev_b32 v{v_tmp + 2}, 2, v{v_tmp + 2}")
        a.e(f"v_sub_u32 v{v_tmp + 1}, v{v_tmp + 1}, v{v_tmp + 2}")
        a.e(f"v_mov_b32 v{v_tmp + 3}, {NEG_BITS:#x}")
        for r in range(16):
            kk0 = 8 * (r // 4) + r % 4
            a.e(f"v_subrev_u32 v{v_tmp + 4}, {kk0}, v{v_tmp + 1}")
            a.e(f"v_ashrrev_i32 v{v_tmp + 4 + 1 + (r & 1)}, 31, v{v_tmp + 4}")
            m = v_tmp + 5 + (r & 1)
            a.e(f"v_and_b32 v{v_bdiag + r}, v{m}, v{v_tmp + 3}")
            a.e(f"v_bfi_b32 v{v_bold + r}, v{m}, 0, v{v_tmp + 3}")
            if r & 1:
                a.e(f"v_mov_b32 v{v_tmp + 7}, 0xffff")
                a.e(f"v_bfi_b32 v{v_tmp + 8}, v{v_tmp + 7}, v{v_tmp + 5}, v{v_tmp + 6}")
                a.e(f"v_not_b32 v{v_pmask + r // 2}, v{v_tmp + 8}")

    def wave_sum2(self, x0, x1, s0, s1):
        a = self.a
        for ctl in ("row_shr:1", "row_shr:2", "row_shr:4", "row_shr:8"):
            a.e(f"v_add_f32_dpp v{x0}, v{x0}, v{x0} {ctl} row_mask:0xf bank_mask:0xf bound_ctrl:0")
            a.e(f"v_add_f32_dpp v{x1}, v{x1}, v{x1} {ctl} row_mask:0xf bank_mask:0xf bound_ctrl:0")
        for ctl, rm in (("row_bcast:15", "0xa"), ("row_bcast:31", "0xc")):
            a.e(f"v_add_f32_dpp v{x0}, v{x0}, v{x0} {ctl} row_mask:{rm} bank_mask:0xf")
            a.e(f"v_add_f32_dpp v{x1}, v{x1}, v{x1} {ctl} row_mask:{rm} bank_mask:0xf")
        a.e(f"v_readlane_b32 s{s0}, v{x0}, 63")
        a.e(f"v_readlane_b32 s{s1}, v{x1}, 63")

    def ln_rows(self, srcA, srcB, dstA, dstB, pre_move=None):
        a = self.a
        if pre_move is None:
            sA, sB, dA, dB = 32, 36, 112, 116
        else:
            sA, sB, dA, dB = 40, 44, 120, 124
        f0, f1 = 64, 72
        for base, src in ((f0, sA), (f1, sB)):
            for i in range(4):
                a.e(f"v_lshlrev_b32 v{base + 2 * i}, 16, v{src + i}")
                a.e(f"v_and_b32 v{base + 2 * i + 1}, 0xffff0000, v{src + i}")
        t0, t1 = 80, 84
        for base, t in ((f0, t0), (f1, t1)):
            a.e(f"v_add_f32 v{t}, v{base}, v{base + 1}")
            a.e(f"v_add_f32 v{t + 1}, v{base + 2}, v{base + 3}")
            a.e(f"v_add_f32 v{t + 2}, v{base + 4}, v{base + 5}")
            a.e(f"v_add_f32 v{t + 3}, v{base + 6}, v{base + 7}")
        for t in (t0, t1):
            a.e(f"v_add_f32 v{t}, v{t}, v{t + 1}")
            a.e(f"v_add_f32 v{t + 2}, v{t + 2}, v{t + 3}")
        for t in (t0, t1):
            a.e(f"v_add_f32 v{t}, v{t}, v{t + 2}")
        self.wave_sum2(t0, t1, s_t0, s_t1)
        a.e("v_mov_b32 v88, 0xbb000000")
        for base, s in ((f0, s_t0), (f1, s_t1)):
            for i in range(8):
                a.e(f"v_fma_f32 v{base + i}, s{s}, v88, v{base + i}")
        for base, t in ((f0, t0), (f1, t1)):
            a.e(f"v_mul_f32 v{t}, v{base}, v{base}")
            a.e(f"v_mul_f32 v{t + 1}, v{base + 1}, v{base + 1}")
        for i in range(2, 8, 2):
            for base, t in ((f0, t0), (f1, t1)):
                a.e(f"v_fmac_f32 v{t}, v{base + i}, v{base + i}")
                a.e(f"v_fmac_f32 v{t + 1}, v{base + i + 1}, v{base + i + 1}")
        for t in (t0, t1):
            a.e(f"v_add_f32 v{t}, v{t}, v{t + 1}")
        self.wave_sum2(t0, t1, s_t0, s_t1)
        a.e("v_mov_b32 v88, 0x3b000000")
        a.e("v_mov_b32 v89, 0x3727c5ac")
        a.e(f"v_fma_f32 v{t0}, s{s_t0}, v88, v89")
        a.e(f"v_fma_f32 v{t1}, s{s_t1}, v88, v89")
        a.e(f"v_rsq_f32 v{t0}, v{t0}")
        a.e(f"v_rsq_f32 v{t1}, v{t1}")
        for base, t in ((f0, t0), (f1, t1)):
            for i in range(8):
                a.e(f"v_mul_f32 v{base + i}, v{base + i}, v{t}")
        for base, d in ((f0, dA), (f1, dB)):
            for i in range(4):
                a.e(f"v_cvt_pk_bf16_f32 v{d + i}, v{base + 2 * i}, v{base + 2 * i + 1}")

    def tr_base_t64(self, dst, natural):
        a = self.a
        t = v_tmp
        a.e(f"v_lshrrev_b32 v{t}, 5, v{v_lane}")
        a.e(f"v_lshlrev_b32 v{t}, {3 if natural else 2}, v{t}")
        a.e(f"v_bfe_u32 v{t + 1}, v{v_lane}, 2, 2")
        a.e(f"v_add_u32 v{t}, v{t}, v{t + 1}")
        a.e(f"v_lshlrev_b32 v{t}, 6, v{t}")
        a.e(f"v_bfe_u32 v{t + 1}, v{v_lane}, 4, 1")
        a.e(f"v_lshl_add_u32 v{t}, v{t + 1}, 5, v{t}")
        a.e(f"v_and_b32 v{t + 1}, 3, v{v_lane}")
        a.e(f"v_lshl_add_u32 v{dst}, v{t + 1}, 3, v{t}")

    def tr_base_t128(self, dst_keep, dst_send):
        a = self.a
        t = v_tmp
        a.e(f"v_lshrrev_b32 v{t}, 5, v{v_lane}")
        a.e(f"v_lshlrev_b32 v{t}, 2, v{t}")
        a.e(f"v_bfe_u32 v{t + 1}, v{v_lane}, 2, 2")
        a.e(f"v_add_u32 v{t}, v{t}, v{t + 1}")
        a.e(f"v_lshlrev_b32 v{t}, 7, v{t}")
        a.e(f"v_lshrrev_b32 v{t + 1}, 1, v{t + 1}")
        a.e(f"v_xor_b32 v{t + 1}, s{s_kh}, v{t + 1}")
        a.e(f"v_lshl_add_u32 v{t}, v{t + 1}, 6, v{t}")
        a.e(f"v_bfe_u32 v{t + 1}, v{v_lane}, 4, 1")
        a.e(f"v_lshl_add_u32 v{t}, v{t + 1}, 5, v{t}")
        a.e(f"v_and_b32 v{t + 1}, 3, v{v_lane}")
        a.e(f"v_lshl_add_u32 v{dst_keep}, v{t + 1}, 3, v{t}")
        a.e(f"v_xor_b32 v{dst_send}, 64, v{dst_keep}")

    def load_frags(self, dsts, base_off, sreg_mul_terms, n, tag, flags="sc1"):
        a = self.a
        first = True
        for reg, mul in sreg_mul_terms:
            if first:
                a.e(f"s_mul_i32 s{s_t0}, s{reg}, {mul}")
                first = False
            else:
                a.e(f"s_mul_i32 s{s_t1}, s{reg}, {mul}")
                a.e(f"s_add_u32 s{s_t0}, s{s_t0}, s{s_t1}")
        return [self._frag_op(dsts[i], base_off, i, f"{tag}{i}", flags) for i in range(n)]

    def frag_base(self, terms, imm):
        a = self.a
        first = True
        for reg, mul in terms:
            if first:
                a.e(f"s_mul_i32 s{s_fbase}, s{reg}, {mul}")
                first = False
            else:
                a.e(f"s_mul_i32 s{s_t1}, s{reg}, {mul}")
                a.e(f"s_add_u32 s{s_fbase}, s{s_fbase}, s{s_t1}")
        if imm:
            a.e(f"s_add_u32 s{s_fbase}, s{s_fbase}, {imm}")
        self._fb_blk = None

    def frag_load(self, dst, i, tag):
        a = self.a
        blk = i // 4
        if self._fb_blk != blk:
            a.e(f"s_add_u32 s{s_fcur}, s{s_fbase}, {blk * 4096}")
            self._fb_blk = blk
        off = f" offset:{(i % 4) * 1024}" if i % 4 else ""
        a.vmem(f"buffer_load_dwordx4 {dst}, v{v_l16}, {sr(SRD_WS, 4)}, s{s_fcur} offen{off} sc1", tag)

    def _frag_op(self, dst, base_off, i, tag, flags):
        a = self.a

        def f():
            if i % 4 == 0:
                a.e(f"s_add_u32 s{s_t2}, s{s_t0}, {base_off + (i // 4) * 4096}")
            off = f" offset:{(i % 4) * 1024}" if i % 4 else ""
            a.vmem(f"buffer_load_dwordx4 {dst}, v{v_l16}, {sr(SRD_WS, 4)}, s{s_t2} offen{off} {flags}", tag)
        return f

    def gemm_pass(self, steps, blocks, bfrag, fillers=None, nbuf=3, abuf=64, wait_tag=None, zero_init=True,
                  step_hook=None, sched=None, bload=None, lead=6, extra_loads=None):
        a = self.a
        if isinstance(steps, int):
            steps = list(range(steps))
        nb = len(blocks)
        fillers = list(fillers or [])
        sched = sched or {}
        ns = len(steps)
        nm = ns * nb
        done = 0
        self.pass_id = getattr(self, "pass_id", 0) + 1
        pid = self.pass_id

        def reads(n):
            p = steps[n]
            if step_hook:
                step_hook(p, n)
            buf = abuf + (n % nbuf) * 4 * nb
            for bi, b in enumerate(blocks):
                r_ = b["addr"](p)
                if len(r_) == 3:
                    va, o0, o1 = r_
                    vb = va
                else:
                    va, o0, vb, o1 = r_
                assert 0 <= o0 < 65536 and 0 <= o1 < 65536, (o0, o1)
                a.ds(f"ds_read_b64_tr_b16 {vr(buf + 4 * bi, 2)}, v{va} offset:{o0}", f"tr{pid}_{n}")
                a.ds(f"ds_read_b64_tr_b16 {vr(buf + 4 * bi + 2, 2)}, v{vb} offset:{o1}", f"tr{pid}_{n}")

        extra_loads = list(extra_loads or [])
        if bload:
            for n in range(min(lead, ns)):
                bload(steps[n])
        for n in range(min(nbuf - 1, ns)):
            reads(n)
        mcount = 0
        for n in range(ns):
            p = steps[n]
            if bload and n + lead < ns:
                bload(steps[n + lead])
            elif extra_loads:
                extra_loads.pop(0)()
            if n + nbuf - 1 < ns:
                reads(n + nbuf - 1)
            if wait_tag and wait_tag(p):
                a.wait_vm(wait_tag(p))
            a.wait_lg(f"tr{pid}_{n}")
            buf = abuf + (n % nbuf) * 4 * nb
            for bi, b in enumerate(blocks):
                acc = vr(b["acc"], 16)
                A = vr(buf + 4 * bi, 4)
                B = bfrag(p)
                if b.get("swap"):
                    A, B = B, A
                c = acc if (n > 0 or not zero_init) else "0"
                a.e(f"v_mfma_f32_32x32x16_bf16 {acc}, {A}, {B}, {c}")
                mcount += 1
                for f in sched.get(mcount, []):
                    f()
                target = (len(fillers) * mcount + nm - 1) // nm
                while done < min(target, len(fillers)):
                    fillers[done]()
                    done += 1
        while done < len(fillers):
            fillers[done]()
            done += 1
        for f in extra_loads:
            f()
        for k in sorted(sched):
            if k > nm:
                for f in sched[k]:
                    f()

    def p1(self):
        a = self.a
        a.e(f"s_cmp_eq_u32 s{s_mode}, 1")
        a.e(f"s_cselect_b32 s{s_t7}, {XNA}, {XNB}")
        self.frag_base([(s_tb, 32768), (s_t7, 1)], 0)
        a.e(f"v_and_b32 v{v_tmp}, 31, v{v_lane}")
        a.e(f"v_lshrrev_b32 v{v_tmp + 1}, 5, v{v_lane}")
        a.e(f"v_lshlrev_b32 v{v_tmp}, 10, v{v_tmp}")
        a.e(f"v_lshl_add_u32 v{v_tmp + 2}, v{v_tmp + 1}, 4, v{v_tmp}")
        a.e(f"s_lshl_b32 s{s_t1}, s{s_tb3}, 15")
        a.e(f"s_lshl_b32 s{s_t2}, s{s_fb}, 6")
        a.e(f"s_add_u32 s{s_t1}, s{s_t1}, s{s_t2}")
        a.e(f"v_mov_b32 v26, v{v_tmp + 2}")
        a.e(f"s_mov_b32 s91, s{s_t1}")

        def xres_loads():
            a.vmem(f"buffer_load_dwordx4 {vr(v_xres, 4)}, v26, {sr(SRD_X, 4)}, s91 offen", "xres")
            a.vmem(f"buffer_load_dwordx4 {vr(v_xres + 4, 4)}, v26, {sr(SRD_X, 4)}, s91 offen offset:32", "xres")
        self.tr_base_t64(v_tr, True)
        a.e(f"v_add_u32 v{v_tr + 1}, 65536, v{v_tr}")
        LEAD = self.opt.get("lead", 6)
        for p in range(LEAD):
            self.frag_load(ar(4 * p, 4), p, f"xb{p}")
        a.e(f"s_waitcnt vmcnt({LEAD})")
        a.e("s_barrier")
        self.stamp("p1 start")
        accK, accV, accQ = 32, 48, 96
        blocks = [dict(acc=accK, addr=lambda p: (v_tr, R[0] + p * 1024, R[0] + p * 1024 + 256)),
                  dict(acc=accV, addr=lambda p: (v_tr, R[1] + p * 1024, R[1] + p * 1024 + 256), swap=True)]
        self.set_wq(4)
        wq = self.dma("q64", SRD_WQKV, R[2], 0, 512, s_cq, 4, "wq")
        sched = {}
        for n, f in enumerate(wq):
            sched.setdefault(2 + 4 * n, []).append(f)
        sched.setdefault(60, []).append(xres_loads)

        def xload(p):
            if p >= LEAD or True:
                self.frag_load(ar(4 * p, 4), p, f"xb{p}")
        first = [True]

        def bl(p):
            if p >= LEAD:
                xload(p)
        self.gemm_pass(32, blocks, lambda p: ar(4 * p, 4), wait_tag=lambda p: f"xb{p}", bload=bl, lead=LEAD, sched=sched)
        self.stamp("p1 kv done")
        a.wait_vm("wq")
        a.e("s_barrier")
        fill = []
        kp, vp = 112, 120
        for i in range(8):
            fill.append(lambda i=i: a.e(f"v_cvt_pk_bf16_f32 v{kp + i}, v{accK + 2 * i}, v{accK + 2 * i + 1}"))
        for i in range(8):
            fill.append(lambda i=i: a.e(f"v_cvt_pk_bf16_f32 v{vp + i}, v{accV + 2 * i}, v{accV + 2 * i + 1}"))

        def kv_stores():
            a.e(f"s_lshl_b32 s{s_t3}, s{s_tb}, 15")
            a.e(f"s_lshl_b32 s{s_t4}, s{s_j}, 11")
            a.e(f"s_add_u32 s{s_t3}, s{s_t3}, s{s_t4}")
            a.e(f"s_add_u32 s{s_t4}, s{s_t3}, {KB}")
            a.vmem(f"buffer_store_dwordx4 {vr(kp, 4)}, v{v_l16}, {sr(SRD_WS, 4)}, s{s_t4} offen sc1", "kvst")
            a.vmem(f"buffer_store_dwordx4 {vr(kp + 4, 4)}, v{v_l16}, {sr(SRD_WS, 4)}, s{s_t4} offen offset:1024 sc1", "kvst")
            a.e(f"s_add_u32 s{s_t4}, s{s_t3}, {VB}")
            a.vmem(f"buffer_store_dwordx4 {vr(vp, 4)}, v{v_l16}, {sr(SRD_WS, 4)}, s{s_t4} offen sc1", "kvst")
            a.vmem(f"buffer_store_dwordx4 {vr(vp + 4, 4)}, v{v_l16}, {sr(SRD_WS, 4)}, s{s_t4} offen offset:1024 sc1", "kvst")
        pre = fill + [kv_stores]
        rest = []
        if self.stop_after >= 4 and self.opt.get("g0_in_q", True):
            rest = self.dma("g192", SRD_WG, LG0, 0, 256, s_cg, 4, "gh0")
        blocks = [dict(acc=accQ, addr=lambda p: (v_tr + 1, R[2] - 65536 + p * 1024, R[2] - 65536 + p * 1024 + 256))]
        sched = {}
        for n, f in enumerate(pre):
            sched.setdefault(1 + n // 3, []).append(f)
        for n, f in enumerate(rest):
            sched.setdefault(8 + (n * 24) // max(len(rest), 1), []).append(f)
        self.gemm_pass(32, blocks, lambda p: ar(4 * p, 4), sched=sched, abuf=64)
        a.e(f"v_mov_b32 v{v_tmp}, 0x3eb8aa3b")
        for i in range(16):
            a.e(f"v_mul_f32 v{accQ + i}, v{accQ + i}, v{v_tmp}")
        for i in range(8):
            a.e(f"v_cvt_pk_bf16_f32 v{176 + i}, v{accQ + 2 * i}, v{accQ + 2 * i + 1}")
        self.stamp("p1 q done")
        a.wait_vm("kvst")
        a.e(f"s_lshl_b32 s{s_t1}, s{s_j}, 13")
        a.e(f"s_add_u32 s{s_t1}, s{s_t1}, {FL2}")
        a.e(f"s_lshl_b32 s{s_t2}, s{s_tb}, 7")
        a.e(f"s_add_u32 s{s_t2}, s{s_t2}, s{s_t1}")
        a.e(f"v_mov_b32 v{v_tmp}, s{s_nonce}")
        a.e(f"v_mov_b32 v{v_tmp + 1}, 0")
        a.e("s_mov_b64 exec, 1")
        a.vmem(f"buffer_store_dword v{v_tmp}, v{v_tmp + 1}, {sr(SRD_WS, 4)}, s{s_t2} offen sc1", "flag")
        a.e("s_mov_b64 exec, -1")
        le = a.newlabel("L_s2e")
        a.e(f"s_cmp_eq_u32 s{s_w}, 0")
        a.e(f"s_cbranch_scc0 {le}")
        a.e(f"s_lshl_b32 s{s_t3}, s{s_rb}, 2")
        a.e(f"s_sub_u32 s{s_t3}, s{s_t3}, 8")
        a.e(f"v_add_u32 v{v_tmp}, s{s_t3}, v{v_lane}")
        a.e(f"v_mov_b32 v{v_tmp + 2}, s{s_tb}")
        a.e(f"v_ashrrev_i32 v{v_tmp + 1}, 31, v{v_tmp}")
        a.e(f"v_bfi_b32 v{v_tmp}, v{v_tmp + 1}, v{v_tmp + 2}, v{v_tmp}")
        a.e(f"v_lshlrev_b32 v{v_tmp}, 7, v{v_tmp}")
        a.e("s_mov_b64 exec, 0xfff")
        a.e(f"s_mov_b32 s{s_cnt}, 0")
        lp = a.newlabel("L_s2p")
        ld = a.newlabel("L_s2d")
        a.label(lp)
        a.e(f"buffer_load_dword v{v_tmp + 1}, v{v_tmp}, {sr(SRD_WS, 4)}, s{s_t1} offen sc1")
        a.e("s_waitcnt vmcnt(0)")
        a.e(f"v_cmp_eq_u32 vcc, s{s_nonce}, v{v_tmp + 1}")
        a.e(f"s_add_u32 s{s_cnt}, s{s_cnt}, 1")
        a.e(f"s_cmp_gt_u32 s{s_cnt}, {POLL_LIMIT}")
        a.e(f"s_cbranch_scc1 {ld}")
        a.e("s_cmp_eq_u64 vcc, 0xfff")
        a.e(f"s_cbranch_scc1 {ld}")
        a.e("s_sleep 1")
        a.e(f"s_branch {lp}")
        a.label(ld)
        a.e("s_mov_b64 exec, -1")
        a.e(f"s_cmp_gt_u32 s{s_cnt}, {POLL_LIMIT}")
        a.e(f"s_cselect_b32 s{s_t0}, 1, 0")
        a.e(f"s_or_b32 s{s_err}, s{s_err}, s{s_t0}")
        a.label(le)
        a.e("s_barrier")
        self.stamp("s2 done")

    def kreg(self, b, h):
        return ar((b * 2 + h) * 4, 4)

    def vreg(self, b, h, st):
        if b < 8:
            return ar(128 + ((b * 2 + h) * 2 + st) * 4, 4)
        return vr(v_vp8 + (h * 2 + st) * 4, 4)

    def p2(self):
        a = self.a
        sblk = 72
        for b in range(9):
            a.e(f"s_sub_i32 s{s_t0}, s{s_tb}, {8 - b}")
            a.e(f"s_max_i32 s{s_t0}, s{s_t0}, 0")
            a.e(f"s_lshl_b32 s{sblk + b}, s{s_t0}, 15")
        a.e(f"s_lshl_b32 s{s_t1}, s{s_j}, 11")
        for b in range(9):
            a.e(f"s_add_u32 s{sblk + b}, s{sblk + b}, s{s_t1}")
        def kload(b):
            a.e(f"s_add_u32 s{s_t2}, s{sblk + b}, {KB}")
            for h in range(2):
                off = " offset:1024" if h else ""
                a.vmem(f"buffer_load_dwordx4 {self.kreg(b, h)}, v{v_l16}, {sr(SRD_WS, 4)}, s{s_t2} offen{off} sc1", f"k{b}")

        def vload(b):
            a.e(f"s_add_u32 s{s_t2}, s{sblk + b}, {VB}")
            a.e(f"s_mov_b64 exec, {sr(s_vmask, 2)}")
            for h in range(2):
                for st in range(2):
                    off = st * 1024 + h * 256
                    offs = f" offset:{off}" if off else ""
                    a.vmem(f"buffer_load_dwordx4 {self.vreg(b, h, st)}, v{v_l16}, {sr(SRD_WS, 4)}, s{s_t2} offen{offs} sc1", f"v{b}")
            a.e("s_mov_b64 exec, -1")
        KL = self.opt.get("klead", 4)
        for b in range(8, 8 - KL, -1):
            kload(b)
        Q = [vr(176, 4), vr(180, 4)]
        S = [[32, 48], [64, 80]]
        NEGM = [96, 112]
        O = [128, 144]
        P = [160, 168]
        M = [184, 186]
        neg = f"v{v_tmp}"
        a.e(f"v_mov_b32 {neg}, {NEG_BITS:#x}")
        for h in range(2):
            a.e(f"v_mov_b32 v{M[h]}, {neg}")
            a.e(f"v_mov_b32 v{M[h] + 1}, {neg}")
            for r in range(16):
                a.e(f"v_mov_b32 v{O[h] + r}, 0")

        def skip_label(b):
            return None

        def cbias(b):
            if b == 0:
                return vr(v_bold, 16)
            if b == 8:
                return vr(v_bdiag, 16)
            return "0"

        order = list(range(8, -1, -1))

        def smfma(h, b, buf, c):
            a.e(f"v_mfma_f32_32x32x16_bf16 {vr(S[h][buf], 16)}, {self.kreg(b, h)}, {Q[h]}, {c}")

        def maxes(h, buf):
            s = S[h][buf]
            for i in range(8):
                m = M[h] + (i & 1)
                a.e(f"v_max3_f32 v{m}, v{s + 2 * i}, v{s + 2 * i + 1}, v{m}")

        def guarded(b, fn):
            if b == 8:
                fn()
                return
            lab = a.newlabel("L_g")
            a.e(f"s_cmp_lt_u32 s{s_tb}, {8 - b}")
            a.e(f"s_cbranch_scc1 {lab}")
            fn()
            a.label(lab)

        dmas = []
        self.set_wq(4)
        if self.stop_after >= 3:
            dmas += self.dma("t128", SRD_WO, R[3], 0, 512, s_c128, 4, "wo")
        if self.stop_after >= 4:
            if not self.opt.get("g0_in_q", True):
                dmas += self.dma("g192", SRD_WG, LG0, 0, 256, s_cg, 4, "gh0")
            dmas += self.dma("g192", SRD_WU, LU0, 0, 256, s_cg, 4, "uh0")
        nslots = 9 + 2 * 9
        slot = [0]

        def dma_slot(weight=1):
            for _ in range(weight):
                slot[0] += 1
                tgt = (len(dmas) * slot[0] + nslots - 1) // nslots
                while dma_done[0] < min(tgt, len(dmas)):
                    dmas[dma_done[0]]()
                    dma_done[0] += 1
        dma_done = [0]
        a.wait_vm("k8")
        self.stamp("p2 k ready")
        for n in range(10):
            if n + KL <= 8:
                kload(order[n + KL])
            if n <= 8:
                b = order[n]
                a.wait_vm(f"k{b}")
                guarded(b, lambda: (smfma(0, b, n & 1, cbias(b)), smfma(1, b, n & 1, cbias(b))))
            if n >= 1:
                vload(order[n - 1])
            if n >= 1:
                guarded(order[n - 1], lambda: (maxes(0, (n - 1) & 1), maxes(1, (n - 1) & 1)))
                dma_slot()
        for h in range(2):
            a.e(f"v_max_f32 v{M[h]}, v{M[h]}, v{M[h] + 1}")
            a.e(f"v_mov_b32 v{M[h] + 1}, v{M[h]}")
        for h in range(2):
            a.e(f"v_permlane32_swap_b32 v{M[h]}, v{M[h] + 1}")
        for h in range(2):
            a.e(f"v_max_f32 v{M[h]}, v{M[h]}, v{M[h] + 1}")
            a.e(f"v_sub_f32 v{NEGM[h]}, 0, v{M[h]}")
        for h in range(2):
            for r in range(1, 16):
                a.e(f"v_mov_b32 v{NEGM[h] + r}, v{NEGM[h]}")
        self.stamp("p2 pass1 done")

        def exps(h, buf, b):
            s = S[h][buf]
            for r in range(16):
                a.e(f"v_exp_f32 v{s + r}, v{s + r}")
            for i in range(8):
                a.e(f"v_cvt_pk_bf16_f32 v{P[h] + i}, v{s + 2 * i}, v{s + 2 * i + 1}")
            if b == 8:
                for i in range(8):
                    a.e(f"v_and_b32 v{P[h] + i}, v{v_pmask + i}, v{P[h] + i}")
            if b == 0:
                for i in range(8):
                    a.e(f"v_bfi_b32 v{P[h] + i}, v{v_pmask + i}, 0, v{P[h] + i}")

        def pv(h, b):
            a.e(f"v_mfma_f32_32x32x16_bf16 {vr(O[h], 16)}, {self.vreg(b, h, 0)}, {vr(P[h], 4)}, {vr(O[h], 16)}")
            a.e(f"v_mfma_f32_32x32x16_bf16 {vr(O[h], 16)}, {self.vreg(b, h, 1)}, {vr(P[h] + 4, 4)}, {vr(O[h], 16)}")

        for n in range(10):
            if n <= 8:
                b = order[n]
                guarded(b, lambda: (smfma(0, b, n & 1, vr(NEGM[0], 16)), smfma(1, b, n & 1, vr(NEGM[1], 16))))
            if n >= 1:
                pb = order[n - 1]
                a.wait_vm(f"v{pb}")
                guarded(pb, lambda: (exps(0, (n - 1) & 1, pb), pv(0, pb)))
                dma_slot()
                guarded(pb, lambda: (exps(1, (n - 1) & 1, pb), pv(1, pb)))
                dma_slot()
        while dma_done[0] < len(dmas):
            dmas[dma_done[0]]()
            dma_done[0] += 1
        for h in range(2):
            a.e(f"v_rcp_f32 v{M[h]}, v{O[h] + 8}")
        for h in range(2):
            for r in range(8):
                a.e(f"v_mul_f32 v{O[h] + r}, v{O[h] + r}, v{M[h]}")
            for i in range(4):
                a.e(f"v_cvt_pk_bf16_f32 v{P[h] + i}, v{O[h] + 2 * i}, v{O[h] + 2 * i + 1}")
        self.stamp("p2 done")
        a.e(f"s_lshl_b32 s{s_t3}, s{s_tb}, 15")
        a.e(f"s_lshl_b32 s{s_t4}, s{s_j}, 11")
        a.e(f"s_add_u32 s{s_t3}, s{s_t3}, s{s_t4}")
        a.e(f"s_add_u32 s{s_t3}, s{s_t3}, {OB}")
        self.stores_mode([f"buffer_store_dwordx4 {vr(P[0], 4)}, v{v_l16}, {sr(SRD_WS, 4)}, s{s_t3} offen",
                          f"buffer_store_dwordx4 {vr(P[1], 4)}, v{v_l16}, {sr(SRD_WS, 4)}, s{s_t3} offen offset:1024"], "pub")
        self.cluster_sync(S3)
        self.stamp("s3 done")

    def ksplit_exchange(self, accKeep, accSend, scratch):
        a = self.a
        a.e(f"s_lshl_b32 s{s_t0}, s{s_w}, 12")
        a.e(f"s_add_u32 s{s_t0}, s{s_t0}, {scratch}")
        a.e(f"v_add_u32 v{v_tmp}, s{s_t0}, v{v_l16}")
        a.e(f"v_xor_b32 v{v_tmp + 1}, 8192, v{v_tmp}")
        for i in range(4):
            a.ds(f"ds_write_b128 v{v_tmp}, {vr(accSend + 4 * i, 4)} offset:{1024 * i}")
        a.wait_lg0()
        a.e("s_barrier")
        for i in range(4):
            a.ds(f"ds_read_b128 {vr(accSend + 4 * i, 4)}, v{v_tmp + 1} offset:{1024 * i}")
        a.wait_lg0()
        for r in range(16):
            a.e(f"v_add_f32 v{accKeep + r}, v{accKeep + r}, v{accSend + r}")

    def p3(self):
        a = self.a
        self.frag_base([(s_tb3, 32768), (s_kh, 16384)], OB)
        LEAD = self.opt.get("lead3", 8)
        for p in range(LEAD):
            self.frag_load(ar(4 * p, 4), p, f"ob{p}")
        vk, vs = v_tr, v_tr + 1
        self.tr_base_t128(vk, vs)
        a.e(f"s_lshl_b32 s{s_t0}, s{s_kh}, 15")
        a.e(f"s_add_u32 s{s_t0}, s{s_t0}, {R[3]}")
        a.e(f"v_add_u32 v{vk}, s{s_t0}, v{vk}")
        a.e(f"v_add_u32 v{vs}, s{s_t0}, v{vs}")
        accK, accS = 32, 48
        blocks = [dict(acc=accK, addr=lambda p: (vk, p * 2048, p * 2048 + 1024)),
                  dict(acc=accS, addr=lambda p: (vs, p * 2048, p * 2048 + 1024))]
        self.gemm_pass(16, blocks, lambda p: ar(4 * p, 4), wait_tag=lambda p: f"ob{p}",
                       bload=lambda p: self.frag_load(ar(4 * p, 4), p, f"ob{p}") if p >= LEAD else None, lead=LEAD)
        self.stamp("p3 mfma done")
        a.e("s_barrier")
        self.ksplit_exchange(accK, accS, R[3])
        x = v_xres
        a.e(f"v_permlane32_swap_b32 v{x + 0}, v{x + 2}")
        a.e(f"v_permlane32_swap_b32 v{x + 1}, v{x + 3}")
        a.e(f"v_permlane32_swap_b32 v{x + 4}, v{x + 6}")
        a.e(f"v_permlane32_swap_b32 v{x + 5}, v{x + 7}")
        for i in range(8):
            a.e(f"v_lshlrev_b32 v{64 + 2 * i}, 16, v{x + i}")
            a.e(f"v_and_b32 v{64 + 2 * i + 1}, 0xffff0000, v{x + i}")
        for r in range(16):
            a.e(f"v_add_f32 v{accK + r}, v{accK + r}, v{64 + r}")
        a.e(f"v_add_f32 v64, v{accK}, v{accK + 1}")
        a.e(f"v_mul_f32 v65, v{accK}, v{accK}")
        a.e(f"v_add_f32 v66, v{accK + 2}, v{accK + 3}")
        a.e(f"v_mul_f32 v67, v{accK + 1}, v{accK + 1}")
        a.e(f"v_fmac_f32 v65, v{accK + 2}, v{accK + 2}")
        a.e(f"v_fmac_f32 v67, v{accK + 3}, v{accK + 3}")
        for r in range(4, 16, 2):
            a.e(f"v_add_f32 v64, v64, v{accK + r}")
            a.e(f"v_fmac_f32 v65, v{accK + r}, v{accK + r}")
            a.e(f"v_add_f32 v66, v66, v{accK + r + 1}")
            a.e(f"v_fmac_f32 v67, v{accK + r + 1}, v{accK + r + 1}")
        a.e("v_add_f32 v64, v64, v66")
        a.e("v_add_f32 v65, v65, v67")
        a.e("v_mov_b32 v66, v64")
        a.e("v_mov_b32 v67, v65")
        a.e("v_permlane32_swap_b32 v64, v66")
        a.e("v_permlane32_swap_b32 v65, v67")
        a.e("v_add_f32 v64, v64, v66")
        a.e("v_add_f32 v65, v65, v67")
        a.e(f"v_lshlrev_b32 v66, 3, v{v_lane}")
        a.e(f"s_lshl_b32 s{s_t3}, s{s_tb3}, 12")
        a.e(f"s_lshl_b32 s{s_t4}, s{s_fb}, 8")
        a.e(f"s_add_u32 s{s_t4}, s{s_t4}, s{s_t3}")
        a.e(f"s_add_u32 s{s_t4}, s{s_t4}, {ST}")
        a.e("s_mov_b32 exec_hi, 0")
        self.stores_mode([f"buffer_store_dwordx2 v[64:65], v66, {sr(SRD_WS, 4)}, s{s_t4} offen"], "pub")
        a.e("s_mov_b64 exec, -1")
        for r in range(16):
            a.e(f"v_accvgpr_write_b32 a{128 + r}, v{accK + r}")
        self.cluster_sync(S4A)
        self.stamp("s4a done")
        a.e(f"v_and_b32 v66, 31, v{v_lane}")
        a.e("v_lshlrev_b32 v66, 3, v66")
        a.e(f"v_lshrrev_b32 v67, 5, v{v_lane}")
        a.e("v_lshl_add_u32 v66, v67, 11, v66")
        a.e(f"s_lshl_b32 s{s_t3}, s{s_tb3}, 12")
        a.e(f"s_add_u32 s{s_t3}, s{s_t3}, {ST}")
        for i in range(8):
            off = f" offset:{256 * i}" if i else ""
            a.vmem(f"buffer_load_dwordx2 {vr(68 + 2 * i, 2)}, v66, {sr(SRD_WS, 4)}, s{s_t3} offen{off} sc1", "st")
        a.wait_vm("st")
        for k in (72, 76, 80):
            a.e(f"v_add_f32 v68, v68, v{k}")
            a.e(f"v_add_f32 v69, v69, v{k + 1}")
            a.e(f"v_add_f32 v70, v70, v{k + 2}")
            a.e(f"v_add_f32 v71, v71, v{k + 3}")
        a.e("v_add_f32 v68, v68, v70")
        a.e("v_add_f32 v69, v69, v71")
        a.e("v_mov_b32 v70, v68")
        a.e("v_mov_b32 v71, v69")
        a.e("v_permlane32_swap_b32 v68, v70")
        a.e("v_permlane32_swap_b32 v69, v71")
        a.e("v_add_f32 v68, v68, v70")
        a.e("v_add_f32 v69, v69, v71")
        a.e("v_mov_b32 v72, 0x3b000000")
        a.e("v_mul_f32 v68, v68, v72")
        a.e("v_mul_f32 v69, v69, v72")
        a.e("v_fma_f32 v69, -v68, v68, v69")
        a.e("v_max_f32 v69, 0, v69")
        a.e("v_add_f32 v69, 0x3727c5ac, v69")
        a.e("v_rsq_f32 v69, v69")
        a.e("v_mul_f32 v70, v68, v69")
        a.e("v_sub_f32 v70, 0, v70")
        for r in range(16):
            a.e(f"v_fma_f32 v{accK + r}, v{accK + r}, v69, v70")
        for i in range(8):
            a.e(f"v_cvt_pk_bf16_f32 v{64 + i}, v{accK + 2 * i}, v{accK + 2 * i + 1}")
        a.e(f"s_lshl_b32 s{s_t3}, s{s_tb3}, 15")
        a.e(f"s_lshl_b32 s{s_t4}, s{s_fb}, 11")
        a.e(f"s_add_u32 s{s_t3}, s{s_t3}, s{s_t4}")
        a.e(f"s_add_u32 s{s_t3}, s{s_t3}, {HN}")
        self.stores_mode([f"buffer_store_dwordx4 v[64:67], v{v_l16}, {sr(SRD_WS, 4)}, s{s_t3} offen",
                          f"buffer_store_dwordx4 v[68:71], v{v_l16}, {sr(SRD_WS, 4)}, s{s_t3} offen offset:1024"], "pub")
        self.cluster_sync(S4B)
        self.stamp("s4b done")

    def gelu_ops(self, accG, accU, tmp, pk):
        a = self.a
        ops = []
        K0, K1 = 28, 29
        for r in range(0, 16, 2):
            t0, t1 = tmp + (r & 2), tmp + (r & 2) + 1
            g0, g1, u0, u1 = accG + r, accG + r + 1, accU + r, accU + r + 1
            seq = [
                f"v_mul_f32 v{t0}, v{g0}, v{g0}", f"v_mul_f32 v{t1}, v{g1}, v{g1}",
                f"v_fma_f32 v{t0}, v{t0}, v{K1}, v{K0}", f"v_fma_f32 v{t1}, v{t1}, v{K1}, v{K0}",
                f"v_mul_f32 v{t0}, v{t0}, v{g0}", f"v_mul_f32 v{t1}, v{t1}, v{g1}",
                f"v_exp_f32 v{t0}, v{t0}", f"v_exp_f32 v{t1}, v{t1}",
                f"v_mul_f32 v{u0}, v{g0}, v{u0}", f"v_mul_f32 v{u1}, v{g1}, v{u1}",
                f"v_add_f32 v{t0}, 1.0, v{t0}", f"v_add_f32 v{t1}, 1.0, v{t1}",
                f"v_rcp_f32 v{t0}, v{t0}", f"v_rcp_f32 v{t1}, v{t1}",
            ]
            for t in seq:
                ops.append(lambda t=t: a.e(t))
            fin = [f"v_mul_f32 v{u0}, v{u0}, v{t0}", f"v_mul_f32 v{u1}, v{u1}, v{t1}",
                   f"v_cvt_pk_bf16_f32 v{pk + r // 2}, v{u0}, v{u1}"]
            for t in fin:
                ops.append(lambda t=t: a.e(t))
        return ops

    def tr_base_192(self, dst):
        a = self.a
        t = v_tmp
        a.e(f"v_lshrrev_b32 v{t}, 5, v{v_lane}")
        a.e(f"v_lshlrev_b32 v{t}, 2, v{t}")
        a.e(f"v_bfe_u32 v{t + 1}, v{v_lane}, 2, 2")
        a.e(f"v_add_u32 v{t}, v{t}, v{t + 1}")
        a.e(f"v_mul_u32_u24 v{t}, 192, v{t}")
        a.e(f"v_bfe_u32 v{t + 1}, v{v_lane}, 4, 1")
        a.e(f"v_lshl_add_u32 v{t}, v{t + 1}, 5, v{t}")
        a.e(f"v_and_b32 v{t + 1}, 3, v{v_lane}")
        a.e(f"v_lshl_add_u32 v{dst}, v{t + 1}, 3, v{t}")

    def wd_dma(self, reg, nwaves, tag):
        p0, cnt, base, delta = reg
        return (self.dma("t128", SRD_WD, base, p0 * 16, cnt * 16, s_c128, nwaves, tag) +
                self.dma("t128", SRD_WD, base + delta, 688 + p0 * 16, cnt * 16, s_c128, nwaves, tag))

    def p4(self):
        a = self.a
        self.frag_base([(s_tb, 32768)], HN)
        LEAD = self.opt.get("lead4", 5)
        for p in range(LEAD):
            self.frag_load(ar(4 * p, 4), p, f"hb{p}")
        self.tr_base_192(v_tr)
        a.e(f"v_add_u32 v{v_tr + 1}, 65536, v{v_tr}")
        a.e(f"v_add_u32 v{v_tr + 2}, 131072, v{v_tr}")
        import struct, math
        k0 = -2.0 * math.sqrt(2.0 / math.pi) * math.log2(math.e)
        k1 = k0 * 0.044715
        a.e(f"v_mov_b32 v28, {struct.unpack('<I', struct.pack('<f', k0))[0]:#x}")
        a.e(f"v_mov_b32 v29, {struct.unpack('<I', struct.pack('<f', k1))[0]:#x}")

        def lds_g(s_):
            return LG0 + s_ * 3072 if s_ < 16 else LG1 + (s_ - 16) * 3072

        def lds_u(s_):
            if s_ < 16:
                return LU0 + s_ * 3072
            if s_ < 21:
                return LU1A + (s_ - 16) * 3072
            if s_ < 29:
                return LU1B + (s_ - 21) * 3072
            return LU1C + (s_ - 29) * 3072

        def addr(fn, pp):
            def f(p):
                base = fn(p) + pp * 64
                w0, w1 = base // 65536, (base + 1536) // 65536
                return (v_tr + w0, base - w0 * 65536, v_tr + w1, base + 1536 - w1 * 65536)
            return f

        accG = [32, 64, 96]
        accU = [48, 80, 112]
        pk = 136
        self.stamp("p4 start")
        self.set_wq(4)
        d1 = self.dma("g192", SRD_WG, LG1, 256, 256, s_cg, 4, "gh1") + self.dma("g192", SRD_WU, LU1A, 256, 80, s_cg, 4, "uh1a")
        d2 = self.dma("g192", SRD_WU, LU1B, 336, 128, s_cg, 4, "uh1b") + self.dma("g192", SRD_WU, LU1C, 464, 48, s_cg, 4, "uh1c")
        sched = {}
        for n, f in enumerate(d1):
            sched.setdefault(1 + (n * 44) // len(d1), []).append(f)
        for n, f in enumerate(d2):
            sched.setdefault(50 + (n * 30) // len(d2), []).append(f)

        def hook(p, n):
            if n == 10:
                a.e("s_barrier")
        blocks = []
        for pp in range(3):
            blocks.append(dict(acc=accG[pp], addr=addr(lds_g, pp)))
            blocks.append(dict(acc=accU[pp], addr=addr(lds_u, pp)))
        for n in range(16):
            sched.setdefault(6 * n + 3, []).append(lambda n=n: self.frag_load(ar(4 * (16 + n), 4), 16 + n, f"hb{16 + n}"))
        self.gemm_pass(list(range(16)), blocks, lambda p: ar(4 * p, 4), sched=sched, wait_tag=lambda p: f"hb{p}",
                       abuf=144, step_hook=hook,
                       bload=lambda p: self.frag_load(ar(4 * p, 4), p, f"hb{p}") if p >= LEAD else None, lead=LEAD)
        a.wait_vm("hb31")
        a.wait_vm("uh1c")
        a.e("s_barrier")
        self.stamp("p4 half0 done")
        for pp in range(3):
            fill = []
            if pp == 0 and self.stop_after >= 5:
                fill += self.wd_dma(WD_X, 4, "wdx")
                fill += self.wd_dma(WD_Y, 4, "wdy")
            if pp >= 1:
                fill += self.gelu_ops(accG[pp - 1], accU[pp - 1], 128, pk)
                fill.append(lambda pp=pp: self.act_store(pp - 1, pk))
            blocks = [dict(acc=accG[pp], addr=addr(lds_g, pp)), dict(acc=accU[pp], addr=addr(lds_u, pp))]
            self.gemm_pass(list(range(16, 32)), blocks, lambda p: ar(4 * p, 4), fillers=fill, zero_init=False, abuf=144)
            self.stamp(f"p4 pair{pp} done")
        for f in self.gelu_ops(accG[2], accU[2], 128, pk):
            f()
        self.act_store(2, pk)
        self.cluster_sync(S5)
        self.stamp("s5 done")

    def act_store(self, ps, pk):
        a = self.a
        a.e(f"s_mul_i32 s{s_t3}, s{s_tb}, {86 * 1024}")
        a.e(f"s_lshl_b32 s{s_t4}, s{s_p0}, 11")
        a.e(f"s_add_u32 s{s_t3}, s{s_t3}, s{s_t4}")
        a.e(f"s_add_u32 s{s_t3}, s{s_t3}, {ACT + ps * 2048}")
        self.stores_mode([f"buffer_store_dwordx4 {vr(pk, 4)}, v{v_l16}, {sr(SRD_WS, 4)}, s{s_t3} offen",
                          f"buffer_store_dwordx4 {vr(pk + 4, 4)}, v{v_l16}, {sr(SRD_WS, 4)}, s{s_t3} offen offset:1024"], "pub")

    def p5(self):
        a = self.a

        def breg(p):
            return ar(4 * p, 4) if p < 32 else ar(144 + 4 * (p - 32), 4)
        self.frag_base([(s_tb3, 86 * 1024), (s_kh, 43 * 1024)], ACT)
        self.set_wq(4)
        LEAD = self.opt.get("lead5", 6)
        for p in range(LEAD):
            self.frag_load(breg(p), p, f"ab{p}")
        pk_, ps_ = v_tr2, v_tr2 + 1
        self.tr_base_t128(pk_, ps_)
        regs = {}
        for n, reg in enumerate((WD_X, WD_Y, WD_Z, WD_W)):
            rk, rs_ = (v_tr + 2 * n, v_tr + 2 * n + 1) if n < 3 else (30, 31)
            a.e(f"s_mul_i32 s{s_t0}, s{s_kh}, {reg[3]}")
            a.e(f"s_add_u32 s{s_t0}, s{s_t0}, {reg[2]}")
            a.e(f"v_add_u32 v{rk}, s{s_t0}, v{pk_}")
            a.e(f"v_add_u32 v{rs_}, s{s_t0}, v{ps_}")
            regs[reg] = (rk, rs_)
        regs[WD_X2] = regs[WD_X]

        def addr(which):
            def f(p):
                for reg in (WD_X, WD_Y, WD_Z, WD_W, WD_X2):
                    if reg[0] <= p < reg[0] + reg[1]:
                        o = (p - reg[0]) * 2048
                        return (regs[reg][which], o, o + 1024)
                raise AssertionError(p)
            return f
        accK, accS = 32, 48
        self.stamp("p5 start")

        def hook(p, n):
            if p == 8:
                a.e("s_barrier")
            if p == 15:
                a.wait_vm("wdz")
                a.e("s_barrier")
            if p == 31:
                a.wait_vm("wdw")
                a.e("s_barrier")
            if p == 37:
                a.wait_vm("wdx2")
                a.e("s_barrier")
        blocks = [dict(acc=accK, addr=addr(0)), dict(acc=accS, addr=addr(1))]
        sched = {}
        z = self.wd_dma(WD_Z, 4, "wdz")
        for n, f in enumerate(z):
            sched.setdefault(1 + (n * 22) // len(z), []).append(f)
        w_ = self.wd_dma(WD_W, 4, "wdw")
        for n, f in enumerate(w_):
            sched.setdefault(26 + (n * 16) // len(w_), []).append(f)
        x2 = self.wd_dma(WD_X2, 4, "wdx2")
        for n, f in enumerate(x2):
            sched.setdefault(44 + (n * 16) // len(x2), []).append(f)
        self.gemm_pass(43, blocks, breg, wait_tag=lambda p: f"ab{p}", step_hook=hook, sched=sched,
                       bload=lambda p: self.frag_load(breg(p), p, f"ab{p}") if p >= LEAD else None, lead=LEAD)
        self.stamp("p5 mfma done")
        a.e("s_barrier")
        self.ksplit_exchange(accK, accS, R[3])
        for r in range(16):
            a.e(f"v_accvgpr_read_b32 v{64 + r}, a{128 + r}")
        for r in range(16):
            a.e(f"v_add_f32 v{accK + r}, v{accK + r}, v{64 + r}")
        for i in range(8):
            a.e(f"v_cvt_pk_bf16_f32 v{64 + i}, v{accK + 2 * i}, v{accK + 2 * i + 1}")
        a.e("v_permlane32_swap_b32 v64, v66")
        a.e("v_permlane32_swap_b32 v65, v67")
        a.e("v_permlane32_swap_b32 v68, v70")
        a.e("v_permlane32_swap_b32 v69, v71")
        a.e(f"v_and_b32 v{v_tmp}, 31, v{v_lane}")
        a.e(f"v_lshrrev_b32 v{v_tmp + 1}, 5, v{v_lane}")
        a.e(f"v_lshlrev_b32 v{v_tmp}, 10, v{v_tmp}")
        a.e(f"v_lshl_add_u32 v{v_tmp + 2}, v{v_tmp + 1}, 4, v{v_tmp}")
        a.e(f"s_lshl_b32 s{s_t1}, s{s_tb3}, 15")
        a.e(f"s_lshl_b32 s{s_t2}, s{s_fb}, 6")
        a.e(f"s_add_u32 s{s_t1}, s{s_t1}, s{s_t2}")
        a.vmem(f"buffer_store_dwordx4 v[64:67], v{v_tmp + 2}, {sr(SRD_OUT, 4)}, s{s_t1} offen", "out")
        a.vmem(f"buffer_store_dwordx4 v[68:71], v{v_tmp + 2}, {sr(SRD_OUT, 4)}, s{s_t1} offen offset:32", "out")
        self.stamp("p5 done")

    def build(self, code_q_instr=8):
        self.code_q_instr = code_q_instr
        self.prologue()
        self.p0()
        if self.stop_after >= 1:
            self.p1()
        if self.stop_after >= 2:
            self.p2()
        if self.stop_after >= 3:
            self.p3()
        if self.stop_after >= 4:
            self.p4()
        if self.stop_after >= 5:
            self.p5()
        self.finish()
        self.a.finalize(verbose=True)
        return self.a.text()


HEADER = """; Kernarg layout (80 bytes): A_x, A_wqkv, A_wo, B_x, B_w_gate, B_w_up, B_w_down, d_out, d_debug, d_ws
; @launch grid=(256,1,1) block=(256,1,1) lds=163840
.amdgcn_target "amdgcn-amd-amdhsa--gfx950"
.set CODE_Q, {code_q}
.text
.globl {k}
.p2align 8
.type {k},@function
{k}:
"""

FOOTER = """.section .rodata,"a"
.p2align 6
.amdhsa_kernel {k}
  .amdhsa_next_free_vgpr 512
  .amdhsa_next_free_sgpr 102
  .amdhsa_accum_offset 256
  .amdhsa_group_segment_fixed_size 0
  .amdhsa_kernarg_size 80
  .amdhsa_user_sgpr_count 2
  .amdhsa_user_sgpr_kernarg_segment_ptr 1
  .amdhsa_system_sgpr_workgroup_id_x 1
.end_amdhsa_kernel
"""


def generate(stop_after=99, profile=False, code_q_instr=9, opt=None):
    g = Gen(stop_after, profile, opt)
    body = g.build(code_q_instr)
    src = HEADER.format(k=KNAME, code_q=code_q_instr * 1024) + body + FOOTER.format(k=KNAME)
    return src, g


if __name__ == "__main__":
    import argparse
    ap = argparse.ArgumentParser()
    ap.add_argument("-o", default="sequential_preLN__sliding_block__geglu_ffn__prompt.s")
    ap.add_argument("--stop", type=int, default=99)
    ap.add_argument("--profile", action="store_true")
    args = ap.parse_args()
    src, g = generate(args.stop, args.profile)
    open(args.o, "w").write(src)
    print("wrote", args.o, len(src), "bytes;", len(g.a.out), "lines")
    if args.profile:
        print("stamps:", list(enumerate(g.stamp_names)))
```

```python
import sys
import os
sys.path.insert(0, os.path.dirname(__file__))
from asmdsl import Asm, vr, ar, sr

KNAME = "sequential_preLN__sliding_block__geglu_ffn__prompt_kernel"

XNA = 0x0000000
XNB = 0x0200000
KB = 0x0400000
VB = 0x0600000
OB = XNA
HN = XNA
ACT = 0x0C00000
ST = 0x1200000
FLG = 0x1300000
FLS = 0x1340000
FL2 = 0x1380000
PROF = 0x1400000
WS_BYTES = 0x10000000

R = [i * 32768 for i in range(5)]
LDS_BYTES = 163840
SCR0 = LDS_BYTES - 8192
LG0, LU0, LG1, LU1A, LU1B, LU1C = 49152, 0, 98304, 147456, 0, 49152
WD_X = (0, 6, 24576, 12288)
WD_Y = (6, 9, 58368, 18432)
WD_Z = (15, 16, 98304, 32768)
WD_W = (31, 6, 0, 12288)
WD_X2 = (37, 6, 24576, 12288)

S1, S3, S4A, S4B, S5, S2L = 0, 1, 2, 3, 4, 5

POLL_LIMIT = 400000
FAST_TRIES = 24

SRD_X, SRD_WQKV, SRD_WO, SRD_WG, SRD_WU, SRD_WD, SRD_OUT, SRD_DBG, SRD_WS = 8, 12, 16, 20, 24, 28, 32, 36, 40
s_rb, s_j, s_w, s_tb, s_nonce, s_mode, s_xcc, s_tb3, s_kh, s_cs, s_fb = 44, 45, 46, 47, 48, 49, 50, 51, 52, 53, 54
s_t0, s_t1, s_t2, s_t3, s_t4, s_t5, s_t6, s_t7 = 56, 57, 58, 59, 60, 61, 62, 63
s_wq = 64
s_dm0, s_dso = 65, 66
s_cnt = 67
s_p0 = 68
s_err = 69
s_vmask = 70
s_dir, s_sgn, s_stm, s_sts = 82, 83, 84, 85
s_cq, s_c128, s_cg = 86, 87, 88
s_fbase, s_fcur = 89, 90
s_rot, s_ckv = 93, 94
s_jmp, s_th, s_jl = 95, 96, 97
s_xres = 91
s_arena = 92
s_tm = 100

v_tid, v_lane, v_l16 = 0, 1, 2
v_dq, v_dg, v_d128 = 3, 4, 5
v_dg1, v_dg2 = 24, 25
v_d128b, v_dqb = 20, 21
v_dkv = 26
v_tr = 6
v_tr2 = 22
v_tmp = 12
v_xres = 192
v_bold, v_bdiag, v_pmask = 200, 216, 232
v_vp8 = 240
v_prof = 27

NEG_BITS = 0xF149F2CA


class Gen:
    def __init__(self, stop_after=99, profile=False, opt=None):
        self.a = Asm()
        self.opt = opt or {}
        self.stop_after = stop_after
        self.profile = profile
        self.nstamp = 0

    def stamp(self, name=""):
        if not self.profile:
            return
        a = self.a
        assert self.nstamp < 64
        a.e(f"s_memtime {sr(s_tm, 2)}")
        a.wait_lg0()
        a.e(f"v_writelane_b32 v{v_prof}, s{s_tm}, {self.nstamp}")
        a.c(f"stamp {self.nstamp}: {name}")
        self.stamp_names = getattr(self, "stamp_names", []) + [name]
        self.nstamp += 1

    def dma(self, kind, srd, lds_base, row0, nrows, col_sreg, nwaves, tag, col_imm=0, rot4=None):
        a = self.a
        if kind == "g192":
            rs, rpg, subs = 2752, 16, [(v_dg, 0), (v_dg1, 1024), (v_dg2, 2048)]
        elif kind == "t128":
            rs, rpg, subs = 1024, 16, [(v_d128, 0), (v_d128b, 1024)]
        else:
            rs, rpg, subs = 3072, 32, [(v_dq, 0), (v_dqb, 1024)]
        lstride = 1024 * len(subs)
        assert nrows % rpg == 0, (kind, nrows)
        ngr = nrows // rpg
        per = -(-ngr // nwaves)
        swap = rot4 is not None and per % 2 == 0 and per >= 2

        def setup():
            a.e(f"s_mul_i32 s{s_t0}, s{s_wq}, {per}")
            if per * nwaves != ngr:
                a.e(f"s_min_u32 s{s_t0}, s{s_t0}, {ngr - per}")
            if per > 1:
                a.e(f"s_mul_i32 s{s_t1}, s{s_dir}, {per - 1}")
                a.e(f"s_add_u32 s{s_t0}, s{s_t0}, s{s_t1}")
                a.e(f"s_mul_i32 s{s_stm}, s{s_sgn}, {lstride}")
                a.e(f"s_mul_i32 s{s_sts}, s{s_sgn}, {rpg * rs}")
                if swap:
                    a.e(f"s_mul_i32 s{s_t1}, s{rot4}, {per // 2}")
                    a.e(f"s_mul_i32 s{s_t1}, s{s_t1}, s{s_sgn}")
                    a.e(f"s_add_u32 s{s_t0}, s{s_t0}, s{s_t1}")
                    a.e(f"s_mul_i32 s{s_jmp}, s{rot4}, {per}")
                    a.e(f"s_mul_i32 s{s_jmp}, s{s_jmp}, s{s_sgn}")
            a.e(f"s_mul_i32 s{s_dm0}, s{s_t0}, {lstride}")
            if lds_base:
                a.e(f"s_add_u32 s{s_dm0}, s{s_dm0}, {lds_base}")
            a.e(f"s_mul_i32 s{s_dso}, s{s_t0}, {rpg * rs}")
            a.e(f"s_add_u32 s{s_dso}, s{s_dso}, s{col_sreg}")
            base = row0 * rs + col_imm
            if base:
                a.e(f"s_add_u32 s{s_dso}, s{s_dso}, {base}")
            a.e(f"s_mov_b32 m0, s{s_dm0}")

        ops = []
        for n in range(per):
            for k, (voff, loff) in enumerate(subs):
                def f(n=n, k=k, voff=voff, loff=loff):
                    if n == 0 and k == 0:
                        setup()
                    off = f" offset:{loff}" if loff else ""
                    a.vmem(f"buffer_load_dwordx4 v{voff}, {sr(srd, 4)}, s{s_dso} offen{off} lds", tag)
                    if k == len(subs) - 1 and n != per - 1:
                        if swap and n == per // 2 - 1:
                            a.e(f"s_sub_u32 s{s_t0}, s{s_sgn}, s{s_jmp}")
                            a.e(f"s_mul_i32 s{s_t1}, s{s_t0}, {lstride}")
                            a.e(f"s_add_u32 s{s_dm0}, s{s_dm0}, s{s_t1}")
                            a.e(f"s_mul_i32 s{s_t1}, s{s_t0}, {rpg * rs}")
                            a.e(f"s_add_u32 s{s_dso}, s{s_dso}, s{s_t1}")
                        else:
                            a.e(f"s_add_u32 s{s_dm0}, s{s_dm0}, s{s_stm}")
                            a.e(f"s_add_u32 s{s_dso}, s{s_dso}, s{s_sts}")
                        a.e(f"s_mov_b32 m0, s{s_dm0}")
                ops.append(f)
        return ops

    def set_wq(self, nwaves):
        a = self.a
        if nwaves == 3:
            a.e(f"s_sub_u32 s{s_wq}, s{s_w}, 1")
        elif nwaves == 2:
            a.e(f"s_sub_u32 s{s_wq}, s{s_w}, 2")
        else:
            a.e(f"s_mov_b32 s{s_wq}, s{s_w}")

    def err(self, code):
        pass

    def poll64(self, flag_off_sreg, nlanes_mask=None):
        a = self.a
        lp = a.newlabel("L_poll")
        dn = a.newlabel("L_polld")
        a.e(f"v_lshlrev_b32 v{v_tmp}, 3, v{v_lane}")
        a.e(f"s_mov_b32 s{s_cnt}, 0")
        a.label(lp)
        a.e(f"buffer_load_dword v{v_tmp + 1}, v{v_tmp}, {sr(SRD_WS, 4)}, s{flag_off_sreg} offen sc1")
        a.e("s_waitcnt vmcnt(0)")
        a.e(f"v_cmp_eq_u32 vcc, s{s_nonce}, v{v_tmp + 1}")
        a.e(f"s_add_u32 s{s_cnt}, s{s_cnt}, 1")
        a.e(f"s_cmp_gt_u32 s{s_cnt}, {POLL_LIMIT}")
        a.e(f"s_cbranch_scc1 {dn}")
        a.e("s_cmp_eq_u64 vcc, -1")
        a.e(f"s_cbranch_scc0 {lp}")
        a.label(dn)
        a.e(f"s_cmp_gt_u32 s{s_cnt}, {POLL_LIMIT}")
        a.e(f"s_cselect_b32 s{s_t0}, 1, 0")
        a.e(f"s_or_b32 s{s_err}, s{s_err}, s{s_t0}")

    def flag_store(self, off_sreg):
        a = self.a
        l1 = a.newlabel("L_fs")
        l2 = a.newlabel("L_fe")
        a.e(f"v_mov_b32 v{v_tmp}, s{s_nonce}")
        a.e(f"v_mov_b32 v{v_tmp + 1}, 0")
        a.e("s_mov_b64 exec, 1")
        a.e(f"s_cmp_eq_u32 s{s_mode}, 1")
        a.e(f"s_cbranch_scc0 {l1}")
        a.e(f"buffer_store_dword v{v_tmp}, v{v_tmp + 1}, {sr(SRD_WS, 4)}, s{off_sreg} offen")
        a.e(f"s_branch {l2}")
        a.label(l1)
        a.e(f"buffer_store_dword v{v_tmp}, v{v_tmp + 1}, {sr(SRD_WS, 4)}, s{off_sreg} offen sc1")
        a.label(l2)
        a.vm.append("flag")
        a.e("s_mov_b64 exec, -1")

    def stores_mode(self, lst, tag):
        a = self.a
        l1 = a.newlabel("L_ss")
        l2 = a.newlabel("L_se")
        a.e(f"s_cmp_eq_u32 s{s_mode}, 1")
        a.e(f"s_cbranch_scc0 {l1}")
        for t in lst:
            a.e(t)
        a.e(f"s_branch {l2}")
        a.label(l1)
        for t in lst:
            a.e(t + " sc1")
        a.label(l2)
        for t in lst:
            a.vm.append(tag)

    def cluster_sync(self, sid, window_dma=None):
        a = self.a
        a.wait_vm("pub")
        a.e(f"s_lshl_b32 s{s_t1}, s{s_rb}, 9")
        a.e(f"s_add_u32 s{s_t1}, s{s_t1}, {FLG + sid * 16 * 512}")
        a.e(f"s_lshl_b32 s{s_t2}, s{s_j}, 2")
        a.e(f"s_add_u32 s{s_t2}, s{s_t2}, s{s_w}")
        a.e(f"s_lshl_b32 s{s_t2}, s{s_t2}, 3")
        a.e(f"s_add_u32 s{s_t2}, s{s_t2}, s{s_t1}")
        self.flag_store(s_t2)
        lw = a.newlabel("L_w0")
        le = a.newlabel("L_we")
        a.e(f"s_cmp_eq_u32 s{s_w}, 0")
        a.e(f"s_cbranch_scc1 {lw}")
        if window_dma:
            self.set_wq(3)
            window_dma()
        a.e(f"s_branch {le}")
        a.label(lw)
        self.poll64(s_t1)
        a.label(le)
        a.e("s_barrier")

    def finish(self):
        a = self.a
        a.label("L_finish")
        a.wait_all()
        lskip = a.newlabel("L_noerr")
        a.e(f"s_cmp_eq_u32 s{s_err}, 0")
        a.e(f"s_cbranch_scc1 {lskip}")
        a.e(f"v_mov_b32 v{v_tmp}, s{s_err}")
        a.e(f"v_mov_b32 v{v_tmp + 1}, 4")
        a.e(f"buffer_store_dword v{v_tmp}, v{v_tmp + 1}, {sr(SRD_DBG, 4)}, 0 offen")
        a.label(lskip)
        if self.profile:
            a.e(f"s_lshl_b32 s{s_t0}, s2, 2")
            a.e(f"s_add_u32 s{s_t0}, s{s_t0}, s{s_w}")
            a.e(f"s_lshl_b32 s{s_t0}, s{s_t0}, 8")
            a.e(f"s_add_u32 s{s_t0}, s{s_t0}, {PROF}")
            a.e(f"v_lshlrev_b32 v{v_tmp}, 2, v{v_lane}")
            a.e(f"buffer_store_dword v{v_prof}, v{v_tmp}, {sr(SRD_WS, 4)}, s{s_t0} offen")
        a.e("s_waitcnt vmcnt(0)")
        a.label("L_exit")
        a.e("s_endpgm")

    def prologue(self):
        a = self.a
        a.e("s_cmp_ge_u32 s2, 256")
        a.e("s_cbranch_scc1 L_exit")
        a.e("s_load_dwordx16 s[64:79], s[0:1], 0")
        a.e("s_load_dwordx4 s[56:59], s[0:1], 64")
        if self.profile:
            a.e(f"s_memtime {sr(s_tm, 2)}")
        a.e(f"s_getreg_b32 s{s_xcc}, hwreg(HW_REG_XCC_ID)")
        a.e(f"s_and_b32 s{s_xcc}, s{s_xcc}, 15")
        a.e(f"s_and_b32 s{s_rb}, s2, 7")
        a.e(f"s_lshl_b32 s{s_rb}, s{s_rb}, 1")
        a.e(f"s_bfe_u32 s{s_j}, s2, 0x10003")
        a.e(f"s_add_u32 s{s_rb}, s{s_rb}, s{s_j}")
        a.e(f"s_lshr_b32 s{s_j}, s2, 4")
        a.e(f"v_lshrrev_b32 v{v_tmp}, 6, v0")
        a.e(f"v_and_b32 v{v_lane}, 63, v0")
        a.e(f"v_readfirstlane_b32 s{s_w}, v{v_tmp}")
        a.e(f"v_lshlrev_b32 v{v_l16}, 4, v{v_lane}")
        a.e(f"s_mov_b32 s{s_mode}, 0")
        a.e(f"s_lshl_b32 s{s_tb}, s{s_rb}, 2")
        a.e(f"s_add_u32 s{s_tb}, s{s_tb}, s{s_w}")
        a.e(f"s_and_b32 s{s_cs}, s{s_j}, 7")
        a.e(f"s_lshr_b32 s{s_kh}, s{s_w}, 1")
        a.e(f"s_lshr_b32 s{s_tb3}, s{s_j}, 3")
        a.e(f"s_lshl_b32 s{s_tb3}, s{s_tb3}, 1")
        a.e(f"s_and_b32 s{s_fb}, s{s_w}, 1")
        a.e(f"s_add_u32 s{s_tb3}, s{s_tb3}, s{s_fb}")
        a.e(f"s_lshl_b32 s{s_fb}, s{s_rb}, 2")
        a.e(f"s_add_u32 s{s_tb3}, s{s_tb3}, s{s_fb}")
        a.e(f"s_lshl_b32 s{s_fb}, s{s_cs}, 1")
        a.e(f"s_add_u32 s{s_fb}, s{s_fb}, s{s_kh}")
        a.e(f"s_mul_i32 s{s_p0 + 12}, s{s_j}, 43")
        a.e(f"v_lshrrev_b32 v{v_tmp}, 2, v{v_lane}")
        a.e(f"v_and_b32 v{v_tmp + 1}, 3, v{v_lane}")
        a.e(f"v_lshlrev_b32 v{v_tmp + 1}, 4, v{v_tmp + 1}")
        a.e(f"v_mul_u32_u24 v{v_dq}, 3072, v{v_tmp}")
        a.e(f"v_add_u32 v{v_dq}, v{v_dq}, v{v_tmp + 1}")
        for i, dst in enumerate((v_dg, v_dg1, v_dg2)):
            a.e(f"v_add_u32 v{v_tmp}, {64 * i}, v{v_lane}")
            a.e(f"v_mul_u32_u24 v{v_tmp + 1}, 43691, v{v_tmp}")
            a.e(f"v_lshrrev_b32 v{v_tmp + 1}, 19, v{v_tmp + 1}")
            a.e(f"v_mul_u32_u24 v{v_tmp + 2}, 12, v{v_tmp + 1}")
            a.e(f"v_sub_u32 v{v_tmp + 2}, v{v_tmp}, v{v_tmp + 2}")
            a.e(f"v_mul_u32_u24 v{v_tmp + 1}, 2752, v{v_tmp + 1}")
            a.e(f"v_lshl_add_u32 v{dst}, v{v_tmp + 2}, 4, v{v_tmp + 1}")
        a.e(f"v_lshrrev_b32 v{v_tmp}, 3, v{v_lane}")
        a.e(f"v_and_b32 v{v_tmp + 1}, 7, v{v_lane}")
        a.e(f"v_lshlrev_b32 v{v_tmp + 2}, 1, v{v_tmp}")
        a.e(f"v_and_b32 v{v_tmp + 2}, 4, v{v_tmp + 2}")
        a.e(f"v_xor_b32 v{v_tmp + 1}, v{v_tmp + 1}, v{v_tmp + 2}")
        a.e(f"v_lshlrev_b32 v{v_tmp + 1}, 4, v{v_tmp + 1}")
        a.e(f"v_lshl_add_u32 v{v_d128}, v{v_tmp}, 10, v{v_tmp + 1}")
        a.e(f"v_add_u32 v{v_d128b}, {8 * 1024 - 1024}, v{v_d128}")
        a.e(f"v_add_u32 v{v_dqb}, {16 * 3072 - 1024}, v{v_dq}")
        a.e(f"v_subrev_u32 v{v_dg1}, 1024, v{v_dg1}")
        a.e(f"v_subrev_u32 v{v_dg2}, 2048, v{v_dg2}")
        a.e(f"v_mul_u32_u24 v{v_dkv}, 3072, v{v_tmp}")
        a.e(f"v_add_u32 v{v_dkv}, v{v_dkv}, v{v_tmp + 1}")
        a.e("s_waitcnt lgkmcnt(0)")
        if self.profile:
            a.e(f"v_writelane_b32 v{v_prof}, s{s_tm}, 0")
            self.nstamp = 1
            self.stamp_names = ["start"]
        for srd, lo, nbytes in ((SRD_X, 64, 2048 * 1024), (SRD_WQKV, 66, 512 * 3072), (SRD_WO, 68, 512 * 1024),
                                (SRD_WG, 72, 512 * 2752), (SRD_WU, 74, 512 * 2752), (SRD_WD, 76, 1376 * 1024),
                                (SRD_OUT, 78, 2048 * 1024), (SRD_DBG, 56, 256), (SRD_WS, 58, WS_BYTES)):
            a.e(f"s_mov_b32 s{srd}, s{lo}")
            a.e(f"s_and_b32 s{srd + 1}, s{lo + 1}, 0xffff")
            a.e(f"s_mov_b32 s{srd + 2}, {nbytes}")
            a.e(f"s_mov_b32 s{srd + 3}, 0x20000")
        a.e(f"s_lshr_b32 s{s_p0}, s80, 4")
        a.e(f"s_mov_b32 s{s_err}, 0")
        a.e(f"s_mov_b32 s{s_vmask}, 0xffff")
        a.e(f"s_mov_b32 s{s_vmask + 1}, 0xffff")
        a.e(f"s_bfe_u32 s{s_dir}, s2, 0x10003")
        a.e(f"s_lshl_b32 s{s_sgn}, s{s_dir}, 1")
        a.e(f"s_sub_u32 s{s_sgn}, 1, s{s_sgn}")
        a.e(f"s_lshl_b32 s{s_cq}, s{s_j}, 6")
        a.e(f"s_lshl_b32 s{s_c128}, s{s_cs}, 7")
        a.e(f"s_lshl_b32 s{s_cg}, s{s_p0}, 6")
        a.e(f"s_lshr_b32 s{s_th}, s{s_j}, 3")
        a.e(f"s_and_b32 s{s_jl}, s{s_j}, 1")
        a.e(f"s_lshl_b32 s{s_rot}, s{s_rb}, 2")
        a.e(f"s_lshl_b32 s{s_ckv}, s{s_j}, 7")
        a.e(f"s_add_u32 s{s_ckv}, s{s_ckv}, 1024")

    def kv_dma(self, n0, wmul, wsub, wmin, cnt):
        a = self.a
        a.e(f"s_sub_u32 s{s_t5}, s{s_w}, {wsub}")
        a.e(f"s_mul_i32 s{s_t5}, s{s_t5}, {wmul}")
        if wmin is not None:
            a.e(f"s_min_u32 s{s_t5}, s{s_t5}, {wmin}")
        a.e(f"s_add_u32 s{s_t5}, s{s_t5}, s{s_rot}")
        a.e(f"s_add_u32 s{s_t5}, s{s_t5}, {n0}")
        for i in range(cnt):
            a.e(f"s_and_b32 s{s_t6}, s{s_t5}, 63")
            a.e(f"s_lshl_b32 m0, s{s_t6}, 10")
            a.e(f"s_mul_i32 s{s_t6}, s{s_t6}, {8 * 3072}")
            a.e(f"s_add_u32 s{s_t6}, s{s_t6}, s{s_ckv}")
            a.e(f"buffer_load_dwordx4 v{v_dkv}, {sr(SRD_WQKV, 4)}, s{s_t6} offen lds")
            if i != cnt - 1:
                a.e(f"s_add_u32 s{s_t5}, s{s_t5}, 1")

    def touch_lines(self, srd, n, first_sreg_mul, imm, dst):
        a = self.a
        a.e(f"s_mul_i32 s{s_t0}, s2, {first_sreg_mul * 128}")
        if imm:
            a.e(f"s_add_u32 s{s_t0}, s{s_t0}, {imm}")
        a.e(f"v_lshlrev_b32 v{dst + 1}, 7, v{v_lane}")
        a.e(f"s_mov_b32 exec_lo, {(1 << min(n, 32)) - 1:#x}")
        a.e(f"s_mov_b32 exec_hi, {((1 << (n - 32)) - 1) if n > 32 else 0:#x}")
        a.e(f"buffer_load_dword v{dst}, v{dst + 1}, {sr(srd, 4)}, s{s_t0} offen")
        a.e("s_mov_b64 exec, -1")

    def p0(self):
        a = self.a
        a.e(f"s_lshl_b32 s{s_t0}, s{s_rb}, 7")
        a.e(f"s_lshl_b32 s{s_t1}, s{s_j}, 3")
        a.e(f"s_add_u32 s{s_t0}, s{s_t0}, s{s_t1}")
        a.e(f"s_lshl_b32 s{s_t1}, s{s_w}, 1")
        a.e(f"s_add_u32 s{s_t0}, s{s_t0}, s{s_t1}")
        a.e(f"s_lshl_b32 s{s_t0}, s{s_t0}, 10")
        a.e(f"buffer_load_dwordx4 v[32:35], v{v_l16}, {sr(SRD_X, 4)}, s{s_t0} offen")
        a.e(f"buffer_load_dwordx4 v[36:39], v{v_l16}, {sr(SRD_X, 4)}, s{s_t0} offen offset:1024")
        self.kv_dma(0, 2, 0, None, 2)
        lw1, lw2, lw3, lje = a.newlabel("L_j1"), a.newlabel("L_j2"), a.newlabel("L_j3"), a.newlabel("L_je")
        a.e(f"s_cmp_eq_u32 s{s_w}, 1")
        a.e(f"s_cbranch_scc1 {lw1}")
        a.e(f"s_cmp_eq_u32 s{s_w}, 2")
        a.e(f"s_cbranch_scc1 {lw2}")
        a.e(f"s_cmp_eq_u32 s{s_w}, 3")
        a.e(f"s_cbranch_scc1 {lw3}")
        lnp = a.newlabel("L_nonp")
        a.e("s_cmp_eq_u32 s2, 0")
        a.e(f"s_cbranch_scc0 {lnp}")
        a.e(f"s_memrealtime {sr(s_t2, 2)}")
        a.e("s_waitcnt lgkmcnt(0)")
        a.e(f"s_or_b32 s{s_t2}, s{s_t2}, 1")
        a.e(f"v_mov_b32 v{v_tmp + 4}, s{s_t2}")
        a.e(f"v_mov_b32 v{v_tmp + 5}, 0")
        a.e("s_mov_b64 exec, 1")
        a.e(f"buffer_store_dword v{v_tmp + 4}, v{v_tmp + 5}, {sr(SRD_DBG, 4)}, 0 offen sc1")
        a.e("s_mov_b64 exec, -1")
        a.label(lnp)
        a.e(f"v_and_b32 v{v_tmp}, 7, v{v_lane}")
        a.e(f"v_lshrrev_b32 v{v_tmp + 1}, 3, v{v_lane}")
        a.e(f"v_lshlrev_b32 v{v_tmp + 3}, 9, v{v_tmp + 1}")
        a.e(f"v_lshl_add_u32 v{v_tmp + 3}, v{v_tmp}, 4, v{v_tmp + 3}")
        a.e(f"s_lshr_b32 s{s_t0}, s{s_j}, 2")
        a.e(f"s_lshl_b32 s{s_t1}, s{s_rb}, 2")
        a.e(f"s_add_u32 s{s_t0}, s{s_t0}, s{s_t1}")
        a.e(f"s_lshl_b32 s{s_t0}, s{s_t0}, 15")
        a.e(f"s_and_b32 s{s_t1}, s{s_j}, 3")
        a.e(f"s_lshl_b32 s{s_t1}, s{s_t1}, 7")
        a.e(f"s_add_u32 s{s_t0}, s{s_t0}, s{s_t1}")
        for i in range(8):
            a.e(f"s_add_u32 s{s_t1}, s{s_t0}, {XNA + i * 4096}")
            a.e(f"buffer_load_dwordx4 v[28:31], v{v_tmp + 3}, {sr(SRD_WS, 4)}, s{s_t1} offen")
        a.e(f"s_branch {lje}")
        a.label(lw1)
        a.e(f"v_lshrrev_b32 v{v_tmp}, 3, v{v_lane}")
        a.e(f"v_and_b32 v{v_tmp + 1}, 7, v{v_lane}")
        a.e(f"v_lshlrev_b32 v{v_tmp}, 13, v{v_tmp}")
        a.e(f"v_lshl_add_u32 v{v_tmp}, v{v_tmp + 1}, 6, v{v_tmp}")
        a.e(f"s_lshl_b32 s{s_t0}, s{s_rb}, 9")
        a.e(f"s_add_u32 s{s_t0}, s{s_t0}, {FLG}")
        a.e("s_mov_b32 exec_hi, 0xffff")
        a.e(f"buffer_load_dword v28, v{v_tmp}, {sr(SRD_WS, 4)}, s{s_t0} offen")
        a.e("s_mov_b64 exec, -1")
        a.e(f"v_lshlrev_b32 v{v_tmp}, 6, v{v_lane}")
        a.e(f"s_lshl_b32 s{s_t0}, s{s_rb}, 14")
        a.e(f"s_lshl_b32 s{s_t1}, s{s_j}, 10")
        a.e(f"s_add_u32 s{s_t0}, s{s_t0}, s{s_t1}")
        a.e(f"s_add_u32 s{s_t0}, s{s_t0}, {ST}")
        a.e("s_mov_b32 exec_lo, 0xffff")
        a.e("s_mov_b32 exec_hi, 0")
        a.e(f"buffer_load_dword v28, v{v_tmp}, {sr(SRD_WS, 4)}, s{s_t0} offen")
        a.e("s_mov_b64 exec, -1")
        a.e(f"s_getpc_b64 {sr(s_t2, 2)}")
        a.label("L_pcref")
        a.e(f"s_lshr_b32 s{s_t4}, s2, 3")
        a.e(f"s_mul_i32 s{s_t4}, s{s_t4}, {self.code_lines * 128}")
        a.e(f"v_lshlrev_b32 v{v_tmp}, 7, v{v_lane}")
        a.e(f"v_add_u32 v{v_tmp}, s{s_t4}, v{v_tmp}")
        a.e(f"s_mov_b32 exec_lo, {(1 << self.code_lines) - 1:#x}")
        a.e("s_mov_b32 exec_hi, 0")
        a.e(f"global_load_dword v29, v{v_tmp}, {sr(s_t2, 2)}")
        a.e("s_mov_b64 exec, -1")
        a.e(f"s_branch {lje}")
        a.label(lw2)
        if self.opt.get("touch", True):
            a.e(f"s_lshl_b32 s{s_t0}, s2, 4")
            a.e(f"v_add_u32 v{v_tmp}, s{s_t0}, v{v_lane}")
            a.e(f"v_lshrrev_b32 v{v_tmp + 1}, 3, v{v_tmp}")
            a.e(f"v_mul_u32_u24 v{v_tmp + 1}, 3072, v{v_tmp + 1}")
            a.e(f"v_and_b32 v{v_tmp}, 7, v{v_tmp}")
            a.e(f"v_lshl_add_u32 v{v_tmp}, v{v_tmp}, 7, v{v_tmp + 1}")
            a.e("s_mov_b32 exec_lo, 0xffff")
            a.e("s_mov_b32 exec_hi, 0")
            a.e(f"buffer_load_dword v28, v{v_tmp}, {sr(SRD_WQKV, 4)}, 0 offen")
            a.e("s_mov_b64 exec, -1")
            self.touch_lines(SRD_WO, 16, 16, 0, 28)
        a.e(f"s_branch {lje}")
        a.label(lw3)
        if self.opt.get("touch", True) and self.opt.get("touch_early_gu", False):
            self.touch_lines(SRD_WG, 43, 43, 0, 28)
            self.touch_lines(SRD_WU, 43, 43, 0, 30)
        a.label(lje)
        self.consts()
        a.e("s_waitcnt vmcnt(0)")
        self.stamp_div("x arrived", 44)
        ln0 = a.newlabel("L_nn0")
        a.e(f"s_cmp_eq_u32 s{s_w}, 0")
        a.e(f"s_cbranch_scc0 {ln0}")
        a.e(f"v_mov_b32 v{v_tmp + 1}, 0")
        a.e(f"buffer_load_dword v100, v{v_tmp + 1}, {sr(SRD_DBG, 4)}, 0 offen sc1")
        a.label(ln0)
        self.kv_dma(8, 7, 0, None, 7)
        self.ln_rows(32, 36, 56, 60)
        a.e(f"s_lshl_b32 s{s_t0}, s{s_w}, 11")
        a.e(f"s_add_u32 s{s_t0}, s{s_t0}, {SCR0}")
        a.e(f"v_add_u32 v{v_tmp}, s{s_t0}, v{v_l16}")
        a.e(f"ds_write_b128 v{v_tmp}, v[112:115]")
        a.e(f"ds_write_b128 v{v_tmp}, v[116:119] offset:1024")
        ln = a.newlabel("L_nn")
        a.e(f"s_cmp_eq_u32 s{s_w}, 0")
        a.e(f"s_cbranch_scc0 {ln}")
        lp = a.newlabel("L_np")
        ld = a.newlabel("L_npd")
        a.e("s_waitcnt vmcnt(7)")
        a.e(f"v_readfirstlane_b32 s{s_nonce}, v100")
        a.e(f"s_mov_b32 s{s_cnt}, 0")
        a.e(f"s_cmp_lg_u32 s{s_nonce}, 0")
        a.e(f"s_cbranch_scc1 {ld}")
        a.e(f"v_mov_b32 v{v_tmp + 1}, 0")
        a.label(lp)
        a.e(f"buffer_load_dword v{v_tmp + 2}, v{v_tmp + 1}, {sr(SRD_DBG, 4)}, 0 offen sc1")
        a.e("s_waitcnt vmcnt(0)")
        a.e(f"v_readfirstlane_b32 s{s_nonce}, v{v_tmp + 2}")
        a.e(f"s_add_u32 s{s_cnt}, s{s_cnt}, 1")
        a.e(f"s_cmp_gt_u32 s{s_cnt}, {POLL_LIMIT}")
        a.e(f"s_cbranch_scc1 {ld}")
        a.e(f"s_cmp_eq_u32 s{s_nonce}, 0")
        a.e(f"s_cbranch_scc1 {lp}")
        a.label(ld)
        a.e(f"s_cmp_gt_u32 s{s_cnt}, {POLL_LIMIT}")
        a.e(f"s_cselect_b32 s{s_t0}, 1, 0")
        a.e(f"s_or_b32 s{s_err}, s{s_err}, s{s_t0}")
        a.label(ln)
        a.e("s_waitcnt lgkmcnt(0)")
        a.e("s_barrier")
        self.stamp("p0 ln done")
        lo = a.newlabel("L_s1o")
        le = a.newlabel("L_s1e")
        a.e(f"s_cmp_eq_u32 s{s_w}, 0")
        a.e(f"s_cbranch_scc0 {lo}")
        a.e(f"v_and_b32 v{v_tmp}, 7, v{v_lane}")
        a.e(f"v_lshrrev_b32 v{v_tmp + 1}, 3, v{v_lane}")
        a.e(f"v_lshlrev_b32 v{v_tmp + 2}, 10, v{v_tmp}")
        a.e(f"v_lshl_add_u32 v{v_tmp + 2}, v{v_tmp + 1}, 4, v{v_tmp + 2}")
        a.e(f"v_add_u32 v{v_tmp + 2}, {SCR0}, v{v_tmp + 2}")
        for i in range(8):
            a.e(f"ds_read_b128 {vr(32 + 4 * i, 4)}, v{v_tmp + 2} offset:{128 * i}")
        a.e(f"v_lshlrev_b32 v{v_tmp + 3}, 9, v{v_tmp + 1}")
        a.e(f"v_lshl_add_u32 v{v_tmp + 3}, v{v_tmp}, 4, v{v_tmp + 3}")
        a.e(f"s_lshr_b32 s{s_t0}, s{s_j}, 2")
        a.e(f"s_lshl_b32 s{s_t1}, s{s_rb}, 2")
        a.e(f"s_add_u32 s{s_t0}, s{s_t0}, s{s_t1}")
        a.e(f"s_lshl_b32 s{s_t0}, s{s_t0}, 15")
        a.e(f"s_and_b32 s{s_t1}, s{s_j}, 3")
        a.e(f"s_lshl_b32 s{s_t1}, s{s_t1}, 7")
        a.e(f"s_add_u32 s{s_t0}, s{s_t0}, s{s_t1}")
        a.e("s_waitcnt lgkmcnt(0)")
        for i in range(8):
            a.e(f"s_add_u32 s{s_t1}, s{s_t0}, {XNA + i * 4096}")
            a.e(f"buffer_store_dwordx4 {vr(32 + 4 * i, 4)}, v{v_tmp + 3}, {sr(SRD_WS, 4)}, s{s_t1} offen")
        a.e(f"s_lshl_b32 s{s_t2}, s{s_rb}, 9")
        a.e(f"s_add_u32 s{s_t2}, s{s_t2}, {FLG + S1 * 16 * 512}")
        a.e(f"s_lshl_b32 s{s_t3}, s{s_j}, 3")
        a.e(f"s_add_u32 s{s_t3}, s{s_t3}, s{s_t2}")
        a.e(f"v_mov_b32 v{v_tmp + 4}, s{s_nonce}")
        a.e(f"v_mov_b32 v{v_tmp + 5}, s{s_xcc}")
        a.e(f"v_mov_b32 v{v_tmp + 6}, 0")
        a.e(f"s_lshl_b32 s{s_t4}, s{s_rb}, 11")
        a.e(f"s_add_u32 s{s_t4}, s{s_t4}, {FLS}")
        a.e(f"v_lshlrev_b32 v{v_tmp}, 3, v{v_lane}")
        a.e(f"v_lshlrev_b32 v{v_tmp + 1}, 7, v{v_lane}")
        a.e("s_waitcnt vmcnt(0)")
        a.e("s_mov_b64 exec, 1")
        a.e(f"buffer_store_dwordx2 {vr(v_tmp + 4, 2)}, v{v_tmp + 6}, {sr(SRD_WS, 4)}, s{s_t3} offen")
        a.e("s_mov_b64 exec, 0xffff")
        a.e(f"s_mov_b32 s{s_cnt}, 0")
        lp = a.newlabel("L_s1p")
        lp2 = a.newlabel("L_s1p2")
        lslow = a.newlabel("L_s1s")
        lfast = a.newlabel("L_s1f")
        ldone = a.newlabel("L_s1d")
        lnopub = a.newlabel("L_s1np")
        a.e(f"buffer_load_dwordx2 v[100:101], v{v_tmp}, {sr(SRD_WS, 4)}, s{s_t2} offen sc1")
        a.e("s_barrier")
        a.e(f"s_branch {lp2}")
        a.label(lp)
        a.e(f"buffer_load_dwordx2 v[100:101], v{v_tmp}, {sr(SRD_WS, 4)}, s{s_t2} offen sc1")
        a.label(lp2)
        a.e("s_waitcnt vmcnt(0)")
        a.e(f"v_cmp_eq_u32 vcc, s{s_nonce}, v100")
        a.e(f"v_cmp_eq_u32 {sr(s_t6, 2)}, s{s_xcc}, v101")
        a.e(f"s_add_u32 s{s_cnt}, s{s_cnt}, 1")
        a.e("s_nop 0")
        a.e(f"s_and_b64 vcc, vcc, {sr(s_t6, 2)}")
        a.e("s_cmp_eq_u64 vcc, 0xffff")
        a.e(f"s_cbranch_scc1 {lfast}")
        a.e(f"s_cmp_lt_u32 s{s_cnt}, {FAST_TRIES}")
        a.e(f"s_cbranch_scc1 {lp}")
        a.e(f"s_cmp_eq_u32 s{s_cnt}, {FAST_TRIES}")
        a.e(f"s_cbranch_scc0 {lnopub}")
        a.e("s_mov_b64 exec, -1")
        for i in range(8):
            a.e(f"s_add_u32 s{s_t1}, s{s_t0}, {XNB + i * 4096}")
            a.e(f"buffer_store_dwordx4 {vr(32 + 4 * i, 4)}, v{v_tmp + 3}, {sr(SRD_WS, 4)}, s{s_t1} offen sc1")
        a.e("s_waitcnt vmcnt(0)")
        a.e(f"s_lshl_b32 s{s_t5}, s{s_j}, 7")
        a.e(f"s_add_u32 s{s_t5}, s{s_t5}, s{s_t4}")
        a.e("s_mov_b64 exec, 1")
        a.e(f"buffer_store_dword v{v_tmp + 4}, v{v_tmp + 6}, {sr(SRD_WS, 4)}, s{s_t5} offen sc1")
        a.e("s_mov_b64 exec, 0xffff")
        a.label(lnopub)
        a.e(f"buffer_load_dword v102, v{v_tmp + 1}, {sr(SRD_WS, 4)}, s{s_t4} offen sc1")
        a.e("s_waitcnt vmcnt(0)")
        a.e(f"v_cmp_eq_u32 vcc, s{s_nonce}, v102")
        a.e(f"s_cmp_gt_u32 s{s_cnt}, {POLL_LIMIT}")
        a.e(f"s_cbranch_scc1 {lslow}")
        a.e("s_cmp_eq_u64 vcc, 0xffff")
        a.e(f"s_cbranch_scc0 {lp}")
        a.label(lslow)
        a.e(f"s_mov_b32 s{s_mode}, 0")
        a.e(f"s_cmp_gt_u32 s{s_cnt}, {POLL_LIMIT}")
        a.e(f"s_cselect_b32 s{s_t0}, 1, 0")
        a.e(f"s_or_b32 s{s_err}, s{s_err}, s{s_t0}")
        a.e(f"s_branch {ldone}")
        a.label(lfast)
        a.e(f"s_mov_b32 s{s_mode}, 1")
        a.label(ldone)
        a.e("s_mov_b64 exec, -1")
        a.e(f"v_mov_b32 v{v_tmp}, s{s_nonce}")
        a.e(f"v_mov_b32 v{v_tmp + 1}, s{s_mode}")
        a.e(f"v_mov_b32 v{v_tmp + 2}, {SCR0}")
        a.e(f"ds_write_b64 v{v_tmp + 2}, {vr(v_tmp, 2)}")
        a.e("s_waitcnt lgkmcnt(0)")
        a.e(f"s_branch {le}")
        a.label(lo)
        a.e("s_barrier")
        self.kv_dma(36, 10, 1, 18, 10)
        if self.opt.get("touch", True) and not self.opt.get("touch_early_gu", False) and self.opt.get("touch_s1", True):
            lte = a.newlabel("L_te")
            a.e(f"s_cmp_eq_u32 s{s_w}, 3")
            a.e(f"s_cbranch_scc0 {lte}")
            self.touch_lines(SRD_WG, 43, 43, 0, 28)
            self.touch_lines(SRD_WU, 43, 43, 0, 30)
            self.touch_lines(SRD_WD, 43, 43, 0, 32)
            a.e("s_waitcnt vmcnt(3)")
            a.e(f"s_branch {le}")
            a.label(lte)
        a.e("s_waitcnt vmcnt(0)")
        a.label(le)
        a.e("s_barrier")
        a.e(f"v_mov_b32 v{v_tmp + 2}, {SCR0}")
        a.e(f"ds_read_b64 {vr(v_tmp, 2)}, v{v_tmp + 2}")
        a.e("s_waitcnt lgkmcnt(0)")
        a.e(f"v_readfirstlane_b32 s{s_nonce}, v{v_tmp}")
        a.e(f"v_readfirstlane_b32 s{s_mode}, v{v_tmp + 1}")
        self.stamp("s1 done")

    def touch(self, srd, n, dst):
        a = self.a
        gran = self.opt.get("touch_gran", 64)
        cnt = n * 128 // gran
        a.e(f"s_mul_i32 s{s_t0}, s2, {n * 128}")
        a.e(f"v_mul_u32_u24 v{dst + 8}, {gran}, v{v_lane}")
        k = 0
        while cnt > 0:
            m = min(cnt, 64)
            if m < 64:
                a.e(f"s_mov_b32 exec_lo, {(1 << min(m, 32)) - 1:#x}")
                a.e(f"s_mov_b32 exec_hi, {((1 << (m - 32)) - 1) if m > 32 else 0:#x}")
            a.e(f"buffer_load_dword v{dst}, v{dst + 8}, {sr(srd, 4)}, s{s_t0} offen")
            if m < 64:
                a.e("s_mov_b64 exec, -1")
            cnt -= m
            if cnt > 0:
                a.e(f"s_add_u32 s{s_t0}, s{s_t0}, {64 * gran}")

    def stamp_div(self, name, idx):
        if not self.profile:
            return
        a = self.a
        a.e(f"s_memtime {sr(s_tm, 2)}")
        a.e("s_waitcnt lgkmcnt(0)")
        a.e(f"v_writelane_b32 v{v_prof}, s{s_tm}, {idx}")
        self.div_stamps = getattr(self, "div_stamps", []) + [(idx, name)]

    def consts(self):
        a = self.a
        a.e(f"v_mov_b32 v{v_tmp}, 0x3f803f80")
        for i in range(128, 256):
            a.e(f"v_accvgpr_write_b32 a{i}, v{v_tmp}")
        for i in range(16):
            a.e(f"v_mov_b32 v{v_vp8 + i}, v{v_tmp}")
        a.e(f"v_and_b32 v{v_tmp + 1}, 31, v{v_lane}")
        a.e(f"v_lshrrev_b32 v{v_tmp + 2}, 5, v{v_lane}")
        a.e(f"v_lshlrev_b32 v{v_tmp + 2}, 2, v{v_tmp + 2}")
        a.e(f"v_sub_u32 v{v_tmp + 1}, v{v_tmp + 1}, v{v_tmp + 2}")
        a.e(f"v_mov_b32 v{v_tmp + 3}, {NEG_BITS:#x}")
        for r in range(16):
            kk0 = 8 * (r // 4) + r % 4
            a.e(f"v_subrev_u32 v{v_tmp + 4}, {kk0}, v{v_tmp + 1}")
            a.e(f"v_ashrrev_i32 v{v_tmp + 4 + 1 + (r & 1)}, 31, v{v_tmp + 4}")
            m = v_tmp + 5 + (r & 1)
            a.e(f"v_and_b32 v{v_bdiag + r}, v{m}, v{v_tmp + 3}")
            a.e(f"v_bfi_b32 v{v_bold + r}, v{m}, 0, v{v_tmp + 3}")
            if r & 1:
                a.e(f"v_mov_b32 v{v_tmp + 7}, 0xffff")
                a.e(f"v_bfi_b32 v104, v{v_tmp + 7}, v{v_tmp + 5}, v{v_tmp + 6}")
                a.e(f"v_not_b32 v{v_pmask + r // 2}, v104")

    def wave_sum2(self, x0, x1, s0, s1):
        a = self.a
        for ctl in ("row_shr:1", "row_shr:2", "row_shr:4", "row_shr:8"):
            a.e(f"v_add_f32_dpp v{x0}, v{x0}, v{x0} {ctl} row_mask:0xf bank_mask:0xf bound_ctrl:0")
            a.e(f"v_add_f32_dpp v{x1}, v{x1}, v{x1} {ctl} row_mask:0xf bank_mask:0xf bound_ctrl:0")
        for ctl, rm in (("row_bcast:15", "0xa"), ("row_bcast:31", "0xc")):
            a.e(f"v_add_f32_dpp v{x0}, v{x0}, v{x0} {ctl} row_mask:{rm} bank_mask:0xf")
            a.e(f"v_add_f32_dpp v{x1}, v{x1}, v{x1} {ctl} row_mask:{rm} bank_mask:0xf")
        a.e(f"v_readlane_b32 s{s0}, v{x0}, 63")
        a.e(f"v_readlane_b32 s{s1}, v{x1}, 63")

    def ln_rows(self, srcA, srcB, dstA, dstB, pre_move=None):
        a = self.a
        if pre_move is None:
            sA, sB, dA, dB = 32, 36, 112, 116
        else:
            sA, sB, dA, dB = 40, 44, 120, 124
        f0, f1 = 64, 72
        for base, src in ((f0, sA), (f1, sB)):
            for i in range(4):
                a.e(f"v_lshlrev_b32 v{base + 2 * i}, 16, v{src + i}")
                a.e(f"v_and_b32 v{base + 2 * i + 1}, 0xffff0000, v{src + i}")
        t0, t1 = 80, 84
        for base, t in ((f0, t0), (f1, t1)):
            a.e(f"v_add_f32 v{t}, v{base}, v{base + 1}")
            a.e(f"v_add_f32 v{t + 1}, v{base + 2}, v{base + 3}")
            a.e(f"v_add_f32 v{t + 2}, v{base + 4}, v{base + 5}")
            a.e(f"v_add_f32 v{t + 3}, v{base + 6}, v{base + 7}")
        for t in (t0, t1):
            a.e(f"v_add_f32 v{t}, v{t}, v{t + 1}")
            a.e(f"v_add_f32 v{t + 2}, v{t + 2}, v{t + 3}")
        for t in (t0, t1):
            a.e(f"v_add_f32 v{t}, v{t}, v{t + 2}")
        self.wave_sum2(t0, t1, s_t0, s_t1)
        a.e("v_mov_b32 v88, 0xbb000000")
        for base, s in ((f0, s_t0), (f1, s_t1)):
            for i in range(8):
                a.e(f"v_fma_f32 v{base + i}, s{s}, v88, v{base + i}")
        for base, t in ((f0, t0), (f1, t1)):
            a.e(f"v_mul_f32 v{t}, v{base}, v{base}")
            a.e(f"v_mul_f32 v{t + 1}, v{base + 1}, v{base + 1}")
        for i in range(2, 8, 2):
            for base, t in ((f0, t0), (f1, t1)):
                a.e(f"v_fmac_f32 v{t}, v{base + i}, v{base + i}")
                a.e(f"v_fmac_f32 v{t + 1}, v{base + i + 1}, v{base + i + 1}")
        for t in (t0, t1):
            a.e(f"v_add_f32 v{t}, v{t}, v{t + 1}")
        self.wave_sum2(t0, t1, s_t0, s_t1)
        a.e("v_mov_b32 v88, 0x3b000000")
        a.e("v_mov_b32 v89, 0x3727c5ac")
        a.e(f"v_fma_f32 v{t0}, s{s_t0}, v88, v89")
        a.e(f"v_fma_f32 v{t1}, s{s_t1}, v88, v89")
        a.e(f"v_rsq_f32 v{t0}, v{t0}")
        a.e(f"v_rsq_f32 v{t1}, v{t1}")
        for base, t in ((f0, t0), (f1, t1)):
            for i in range(8):
                a.e(f"v_mul_f32 v{base + i}, v{base + i}, v{t}")
        for base, d in ((f0, dA), (f1, dB)):
            for i in range(4):
                a.e(f"v_cvt_pk_bf16_f32 v{d + i}, v{base + 2 * i}, v{base + 2 * i + 1}")

    def tr_base_t64(self, dst, natural):
        a = self.a
        t = v_tmp
        a.e(f"v_lshrrev_b32 v{t}, 5, v{v_lane}")
        a.e(f"v_lshlrev_b32 v{t}, {3 if natural else 2}, v{t}")
        a.e(f"v_bfe_u32 v{t + 1}, v{v_lane}, 2, 2")
        a.e(f"v_add_u32 v{t}, v{t}, v{t + 1}")
        a.e(f"v_lshlrev_b32 v{t}, 6, v{t}")
        a.e(f"v_bfe_u32 v{t + 1}, v{v_lane}, 4, 1")
        a.e(f"v_lshl_add_u32 v{t}, v{t + 1}, 5, v{t}")
        a.e(f"v_and_b32 v{t + 1}, 3, v{v_lane}")
        a.e(f"v_lshl_add_u32 v{dst}, v{t + 1}, 3, v{t}")

    def tr_base_t128(self, dst_keep, dst_send):
        a = self.a
        t = v_tmp
        a.e(f"v_lshrrev_b32 v{t}, 5, v{v_lane}")
        a.e(f"v_lshlrev_b32 v{t}, 2, v{t}")
        a.e(f"v_bfe_u32 v{t + 1}, v{v_lane}, 2, 2")
        a.e(f"v_add_u32 v{t}, v{t}, v{t + 1}")
        a.e(f"v_lshlrev_b32 v{t}, 7, v{t}")
        a.e(f"v_lshrrev_b32 v{t + 1}, 1, v{t + 1}")
        a.e(f"v_xor_b32 v{t + 1}, s{s_kh}, v{t + 1}")
        a.e(f"v_lshl_add_u32 v{t}, v{t + 1}, 6, v{t}")
        a.e(f"v_bfe_u32 v{t + 1}, v{v_lane}, 4, 1")
        a.e(f"v_lshl_add_u32 v{t}, v{t + 1}, 5, v{t}")
        a.e(f"v_and_b32 v{t + 1}, 3, v{v_lane}")
        a.e(f"v_lshl_add_u32 v{dst_keep}, v{t + 1}, 3, v{t}")
        a.e(f"v_xor_b32 v{dst_send}, 64, v{dst_keep}")

    def load_frags(self, dsts, base_off, sreg_mul_terms, n, tag, flags="sc1"):
        a = self.a
        first = True
        for reg, mul in sreg_mul_terms:
            if first:
                a.e(f"s_mul_i32 s{s_t0}, s{reg}, {mul}")
                first = False
            else:
                a.e(f"s_mul_i32 s{s_t1}, s{reg}, {mul}")
                a.e(f"s_add_u32 s{s_t0}, s{s_t0}, s{s_t1}")
        return [self._frag_op(dsts[i], base_off, i, f"{tag}{i}", flags) for i in range(n)]

    def frag_base(self, terms, imm):
        a = self.a
        first = True
        for reg, mul in terms:
            if first:
                a.e(f"s_mul_i32 s{s_fbase}, s{reg}, {mul}")
                first = False
            else:
                a.e(f"s_mul_i32 s{s_t1}, s{reg}, {mul}")
                a.e(f"s_add_u32 s{s_fbase}, s{s_fbase}, s{s_t1}")
        if imm:
            a.e(f"s_add_u32 s{s_fbase}, s{s_fbase}, {imm}")
        self._fb_blk = None

    def frag_load(self, dst, i, tag):
        a = self.a
        blk = i // 4
        if self._fb_blk != blk:
            a.e(f"s_add_u32 s{s_fcur}, s{s_fbase}, {blk * 4096}")
            self._fb_blk = blk
        off = f" offset:{(i % 4) * 1024}" if i % 4 else ""
        a.vmem(f"buffer_load_dwordx4 {dst}, v{v_l16}, {sr(SRD_WS, 4)}, s{s_fcur} offen{off} sc1", tag)

    def _frag_op(self, dst, base_off, i, tag, flags):
        a = self.a

        def f():
            if i % 4 == 0:
                a.e(f"s_add_u32 s{s_t2}, s{s_t0}, {base_off + (i // 4) * 4096}")
            off = f" offset:{(i % 4) * 1024}" if i % 4 else ""
            a.vmem(f"buffer_load_dwordx4 {dst}, v{v_l16}, {sr(SRD_WS, 4)}, s{s_t2} offen{off} {flags}", tag)
        return f

    def gemm_pass(self, steps, blocks, bfrag, fillers=None, nbuf=3, abuf=64, wait_tag=None, zero_init=True,
                  step_hook=None, sched=None, bload=None, lead=6, extra_loads=None):
        a = self.a
        if isinstance(steps, int):
            steps = list(range(steps))
        nb = len(blocks)
        fillers = list(fillers or [])
        sched = sched or {}
        ns = len(steps)
        nm = ns * nb
        done = 0
        self.pass_id = getattr(self, "pass_id", 0) + 1
        pid = self.pass_id

        def reads(n):
            p = steps[n]
            if step_hook:
                step_hook(p, n)
            buf = abuf + (n % nbuf) * 4 * nb
            for bi, b in enumerate(blocks):
                r_ = b["addr"](p)
                if len(r_) == 3:
                    va, o0, o1 = r_
                    vb = va
                else:
                    va, o0, vb, o1 = r_
                assert 0 <= o0 < 65536 and 0 <= o1 < 65536, (o0, o1)
                a.ds(f"ds_read_b64_tr_b16 {vr(buf + 4 * bi, 2)}, v{va} offset:{o0}", f"tr{pid}_{n}")
                a.ds(f"ds_read_b64_tr_b16 {vr(buf + 4 * bi + 2, 2)}, v{vb} offset:{o1}", f"tr{pid}_{n}")

        extra_loads = list(extra_loads or [])
        if bload:
            for n in range(min(lead, ns)):
                bload(steps[n])
        for n in range(min(nbuf - 1, ns)):
            reads(n)
        mcount = 0
        for n in range(ns):
            p = steps[n]
            if bload and n + lead < ns:
                bload(steps[n + lead])
            elif extra_loads:
                extra_loads.pop(0)()
            if n + nbuf - 1 < ns:
                reads(n + nbuf - 1)
            if wait_tag and wait_tag(p):
                a.wait_vm(wait_tag(p))
            a.wait_lg(f"tr{pid}_{n}")
            buf = abuf + (n % nbuf) * 4 * nb
            for bi, b in enumerate(blocks):
                acc = vr(b["acc"], 16)
                A = vr(buf + 4 * bi, 4)
                B = bfrag(p)
                if b.get("swap"):
                    A, B = B, A
                c = acc if (n > 0 or not zero_init) else "0"
                a.e(f"v_mfma_f32_32x32x16_bf16 {acc}, {A}, {B}, {c}")
                mcount += 1
                for f in sched.get(mcount, []):
                    f()
                target = (len(fillers) * mcount + nm - 1) // nm
                while done < min(target, len(fillers)):
                    fillers[done]()
                    done += 1
        while done < len(fillers):
            fillers[done]()
            done += 1
        for f in extra_loads:
            f()
        for k in sorted(sched):
            if k > nm:
                for f in sched[k]:
                    f()

    def tr_base_t128n(self, d0, d1):
        a = self.a
        t = v_tmp
        a.e(f"v_lshrrev_b32 v{t}, 5, v{v_lane}")
        a.e(f"v_lshlrev_b32 v{t}, 3, v{t}")
        a.e(f"v_bfe_u32 v{t + 1}, v{v_lane}, 2, 2")
        a.e(f"v_add_u32 v{t}, v{t}, v{t + 1}")
        a.e(f"v_lshlrev_b32 v{t}, 7, v{t}")
        a.e(f"v_lshrrev_b32 v{t + 1}, 1, v{t + 1}")
        a.e(f"v_lshl_add_u32 v{t}, v{t + 1}, 6, v{t}")
        a.e(f"v_bfe_u32 v{t + 1}, v{v_lane}, 4, 1")
        a.e(f"v_lshl_add_u32 v{t}, v{t + 1}, 5, v{t}")
        a.e(f"v_and_b32 v{t + 1}, 3, v{v_lane}")
        a.e(f"v_lshl_add_u32 v{d0}, v{t + 1}, 3, v{t}")
        a.e(f"v_xor_b32 v{d1}, 64, v{d0}")

    def p1(self):
        a = self.a
        a.e(f"s_cmp_eq_u32 s{s_mode}, 1")
        a.e(f"s_cselect_b32 s{s_arena}, {XNA}, {XNB}")
        self.frag_base([(s_tb, 32768), (s_arena, 1)], 0)
        LEAD = self.opt.get("lead", 7)
        for p in range(LEAD):
            self.frag_load(ar(4 * p, 4), p, f"xb{p}")
        self.tr_base_t128n(v_tr, v_tr + 1)
        self.stamp("p1 start")
        acc0, acc1, accQ = 32, 48, 96
        lv = a.newlabel("L_kvV")
        le = a.newlabel("L_kvE")
        a.e(f"s_cmp_ge_u32 s{s_j}, 8")
        a.e(f"s_cbranch_scc1 {lv}")
        vm0, lg0, fb0 = list(a.vm), list(a.lg), self._fb_blk
        for variant in range(2):
            if variant == 1:
                a.e(f"s_branch {le}")
                a.label(lv)
                a.vm, a.lg, self._fb_blk = list(vm0), list(lg0), fb0
            blocks = [dict(acc=acc0, addr=lambda p: (v_tr, p * 2048, p * 2048 + 512), swap=(variant == 1)),
                      dict(acc=acc1, addr=lambda p: (v_tr + 1, p * 2048, p * 2048 + 512), swap=(variant == 1))]
            self.gemm_pass(32, blocks, lambda p: ar(4 * p, 4), wait_tag=lambda p: f"xb{p}",
                           bload=lambda p: self.frag_load(ar(4 * p, 4), p, f"xb{p}") if p >= LEAD else None, lead=LEAD)
        a.label(le)
        self.stamp("p1 kv done")
        kp = 112
        for i in range(8):
            a.e(f"v_cvt_pk_bf16_f32 v{kp + i}, v{acc0 + 2 * i}, v{acc0 + 2 * i + 1}")
        for i in range(8):
            a.e(f"v_cvt_pk_bf16_f32 v{kp + 8 + i}, v{acc1 + 2 * i}, v{acc1 + 2 * i + 1}")
        a.e(f"s_cmp_ge_u32 s{s_j}, 8")
        a.e(f"s_cselect_b32 s{s_t4}, {VB - KB}, 0")
        a.e(f"s_add_u32 s{s_t4}, s{s_t4}, {KB}")
        a.e(f"s_lshl_b32 s{s_t3}, s{s_tb}, 15")
        a.e(f"s_add_u32 s{s_t4}, s{s_t4}, s{s_t3}")
        a.e(f"s_and_b32 s{s_t3}, s{s_j}, 7")
        a.e(f"s_lshl_b32 s{s_t3}, s{s_t3}, 12")
        a.e(f"s_add_u32 s{s_t4}, s{s_t4}, s{s_t3}")
        for i in range(4):
            off = f" offset:{1024 * i}" if i else ""
            a.vmem(f"buffer_store_dwordx4 {vr(kp + 4 * i, 4)}, v{v_l16}, {sr(SRD_WS, 4)}, s{s_t4} offen{off} sc1", "kvst")
        self.tr_base_t64(v_tr + 2, True)
        a.e(f"v_add_u32 v{v_tr + 2}, {R[2]}, v{v_tr + 2}")
        a.e(f"v_and_b32 v{v_tmp}, 31, v{v_lane}")
        a.e(f"v_lshrrev_b32 v{v_tmp + 1}, 5, v{v_lane}")
        a.e(f"v_lshlrev_b32 v{v_tmp}, 10, v{v_tmp}")
        a.e(f"v_lshl_add_u32 v{v_tr + 4}, v{v_tmp + 1}, 4, v{v_tmp}")
        a.e(f"s_lshl_b32 s{s_t1}, s{s_tb3}, 15")
        a.e(f"s_lshl_b32 s{s_t2}, s{s_fb}, 6")
        a.e(f"s_add_u32 s{s_xres}, s{s_t1}, s{s_t2}")
        a.wait_vm("kvst")
        a.e(f"s_lshl_b32 s{s_t1}, s{s_j}, 13")
        a.e(f"s_add_u32 s{s_t1}, s{s_t1}, {FL2}")
        a.e(f"s_lshl_b32 s{s_t2}, s{s_tb}, 7")
        a.e(f"s_add_u32 s{s_t2}, s{s_t2}, s{s_t1}")
        a.e(f"v_mov_b32 v{v_tmp}, s{s_nonce}")
        a.e(f"v_mov_b32 v{v_tmp + 1}, 0")
        a.e("s_mov_b64 exec, 1")
        a.vmem(f"buffer_store_dword v{v_tmp}, v{v_tmp + 1}, {sr(SRD_WS, 4)}, s{s_t2} offen sc1", "flag")
        a.e("s_mov_b64 exec, -1")
        a.e(f"s_lshl_b32 s{s_t4}, s{s_rb}, 9")
        a.e(f"s_add_u32 s{s_t4}, s{s_t4}, {FLG + S2L * 16 * 512}")
        a.e(f"s_lshl_b32 s{s_t2}, s{s_j}, 2")
        a.e(f"s_add_u32 s{s_t2}, s{s_t2}, s{s_w}")
        a.e(f"s_lshl_b32 s{s_t2}, s{s_t2}, 3")
        a.e(f"s_add_u32 s{s_t2}, s{s_t2}, s{s_t4}")
        self.flag_store(s_t2)
        self.stamp("p1 flags out")
        self.set_wq(4)
        for f in self.dma("q64", SRD_WQKV, R[2], 0, 512, s_cq, 4, "wq", rot4=s_jl):
            f()
        a.wait_vm("wq")
        a.e("s_barrier")
        self.stamp("wq landed")
        wo = []
        if self.stop_after >= 3:
            wo = self.dma("t128", SRD_WO, R[3], 0, 512, s_c128, 4, "wo", rot4=s_th)
        nq = self.opt.get("wo_in_q", 6)
        sched = {}
        for n, f in enumerate(wo[:nq]):
            sched.setdefault(1 + (n * 30) // max(nq, 1), []).append(f)
        blocks = [dict(acc=accQ, addr=lambda p: (v_tr + 2, p * 1024, p * 1024 + 256))]
        self.gemm_pass(32, blocks, lambda p: ar(4 * p, 4), sched=sched, abuf=64)
        a.e(f"v_mov_b32 v{v_tmp}, 0x3eb8aa3b")
        for i in range(16):
            a.e(f"v_mul_f32 v{accQ + i}, v{accQ + i}, v{v_tmp}")
        for i in range(8):
            a.e(f"v_cvt_pk_bf16_f32 v{176 + i}, v{accQ + 2 * i}, v{accQ + 2 * i + 1}")
        self.stamp("p1 q done")
        le = a.newlabel("L_s2e")
        a.e(f"s_cmp_eq_u32 s{s_w}, 0")
        a.e(f"s_cbranch_scc0 {le}")
        a.e(f"s_lshl_b32 s{s_t3}, s{s_rb}, 2")
        a.e(f"s_sub_u32 s{s_t3}, s{s_t3}, 8")
        a.e(f"v_and_b32 v{v_tmp + 3}, 15, v{v_lane}")
        a.e(f"v_add_u32 v{v_tmp}, s{s_t3}, v{v_tmp + 3}")
        a.e(f"v_mov_b32 v{v_tmp + 2}, s{s_tb}")
        a.e(f"v_ashrrev_i32 v{v_tmp + 1}, 31, v{v_tmp}")
        a.e(f"v_bfi_b32 v{v_tmp}, v{v_tmp + 1}, v{v_tmp + 2}, v{v_tmp}")
        a.e(f"v_lshlrev_b32 v{v_tmp}, 7, v{v_tmp}")
        a.e(f"v_lshrrev_b32 v{v_tmp + 1}, 4, v{v_lane}")
        a.e(f"s_lshr_b32 s{s_t3}, s{s_j}, 1")
        a.e(f"v_lshl_add_u32 v{v_tmp + 1}, v{v_tmp + 1}, 3, s{s_t3}")
        a.e(f"v_lshl_add_u32 v{v_tmp}, v{v_tmp + 1}, 13, v{v_tmp}")
        a.e(f"s_mov_b32 s{s_t1}, {FL2}")
        a.e("s_mov_b32 exec_lo, 0x0fff0fff")
        a.e("s_mov_b32 exec_hi, 0")
        a.e(f"s_mov_b32 s{s_cnt}, 0")
        lp = a.newlabel("L_s2p")
        ld = a.newlabel("L_s2d")
        a.label(lp)
        a.e(f"buffer_load_dword v{v_tmp + 1}, v{v_tmp}, {sr(SRD_WS, 4)}, s{s_t1} offen sc1")
        a.e("s_waitcnt vmcnt(0)")
        a.e(f"v_cmp_eq_u32 vcc, s{s_nonce}, v{v_tmp + 1}")
        a.e(f"s_add_u32 s{s_cnt}, s{s_cnt}, 1")
        a.e(f"s_cmp_gt_u32 s{s_cnt}, {POLL_LIMIT}")
        a.e(f"s_cbranch_scc1 {ld}")
        a.e("s_cmp_eq_u64 vcc, 0x0fff0fff")
        a.e(f"s_cbranch_scc1 {ld}")
        a.e("s_sleep 1")
        a.e(f"s_branch {lp}")
        a.label(ld)
        a.e("s_mov_b64 exec, -1")
        a.e(f"s_cmp_gt_u32 s{s_cnt}, {POLL_LIMIT}")
        a.e(f"s_cselect_b32 s{s_t0}, 1, 0")
        a.e(f"s_or_b32 s{s_err}, s{s_err}, s{s_t0}")
        self.poll64(s_t4)
        a.label(le)
        a.e("s_barrier")
        self.stamp("s2 done")
        for i in range(3):
            a.e(f"s_mul_i32 s{s_t0}, s{s_w}, 3")
            a.e(f"s_lshl_b32 s{s_t1}, s{s_rb}, 2")
            a.e(f"s_add_u32 s{s_t1}, s{s_t1}, s{s_t0}")
            a.e(f"s_add_u32 s{s_t1}, s{s_t1}, {i}")
            a.e(f"s_sub_i32 s{s_t1}, s{s_t1}, 8")
            a.e(f"s_max_i32 s{s_t1}, s{s_t1}, 0")
            a.e(f"s_lshl_b32 s{s_t1}, s{s_t1}, 15")
            a.e(f"s_lshl_b32 s{s_t2}, s{s_j}, 11")
            a.e(f"s_add_u32 s{s_t1}, s{s_t1}, s{s_t2}")
            a.e(f"s_add_u32 s{s_t0}, s{s_t0}, {i}")
            a.e(f"s_lshl_b32 s{s_t0}, s{s_t0}, 12")
            for part, gbase in ((0, KB), (1, KB + 1024), (2, VB), (3, VB + 1024)):
                a.e(f"s_add_u32 m0, s{s_t0}, {part * 1024}")
                a.e(f"s_add_u32 s{s_t2}, s{s_t1}, {gbase}")
                a.vmem(f"buffer_load_dwordx4 v{v_l16}, {sr(SRD_WS, 4)}, s{s_t2} offen sc1 lds", "kvs")
        self._wo_rest = wo[nq:]

        def xres_loads():
            a.vmem(f"buffer_load_dwordx4 {vr(v_xres, 4)}, v{v_tr + 4}, {sr(SRD_X, 4)}, s{s_xres} offen", "xres")
            a.vmem(f"buffer_load_dwordx4 {vr(v_xres + 4, 4)}, v{v_tr + 4}, {sr(SRD_X, 4)}, s{s_xres} offen offset:32", "xres")
        self._xres_loads = xres_loads
        a.wait_vm("kvs")
        a.e("s_barrier")
        a.e(f"s_lshl_b32 s{s_t0}, s{s_w}, 12")
        a.e(f"v_add_u32 v{v_tmp}, s{s_t0}, v{v_l16}")
        for b in range(8, -1, -1):
            for h in range(2):
                a.ds(f"ds_read_b128 {self.kreg(b, h)}, v{v_tmp} offset:{b * 4096 + h * 1024}", f"k{b}")
        a.e(f"s_mov_b64 exec, {sr(s_vmask, 2)}")
        for b in range(8, -1, -1):
            for h in range(2):
                for st in range(2):
                    a.ds(f"ds_read_b128 {self.vreg(b, h, st)}, v{v_tmp} offset:{b * 4096 + 2048 + st * 1024 + h * 256}", f"v{b}")
        a.e("s_mov_b64 exec, -1")
        a.wait_lg0()
        a.e("s_barrier")
        self.stamp("kv in regs")

    def kreg(self, b, h):
        return ar((b * 2 + h) * 4, 4)

    def vreg(self, b, h, st):
        if b < 8:
            return ar(128 + ((b * 2 + h) * 2 + st) * 4, 4)
        return vr(v_vp8 + (h * 2 + st) * 4, 4)

    def p2(self):
        a = self.a
        Q = [vr(176, 4), vr(180, 4)]
        S = [[32, 48], [64, 80]]
        NEGM = [96, 112]
        O = [128, 144]
        P = [160, 168]
        M = [184, 186]
        neg = f"v{v_tmp}"
        a.e(f"v_mov_b32 {neg}, {NEG_BITS:#x}")
        for h in range(2):
            a.e(f"v_mov_b32 v{M[h]}, {neg}")
            a.e(f"v_mov_b32 v{M[h] + 1}, {neg}")
        BI = 160
        for r in range(0, 16, 2):
            a.e(f"v_mov_b64 {vr(BI + r, 2)}, 0")

        def skip_label(b):
            return None

        def cbias(b):
            if b == 0:
                return vr(v_bold, 16)
            if b == 8:
                return vr(v_bdiag, 16)
            return vr(BI, 16)

        order = list(range(8, -1, -1))

        def smfma(h, b, buf, c):
            a.e(f"v_mfma_f32_32x32x16_bf16 {vr(S[h][buf], 16)}, {self.kreg(b, h)}, {Q[h]}, {c}")

        def maxes(h, buf):
            s = S[h][buf]
            for i in range(8):
                m = M[h] + (i & 1)
                a.e(f"v_max3_f32 v{m}, v{s + 2 * i}, v{s + 2 * i + 1}, v{m}")

        def invalidate_at(b, regs):
            if b == 8:
                return
            lab = a.newlabel("L_g")
            a.e(f"s_cmp_eq_u32 s{s_tb}, {7 - b}")
            a.e(f"s_cbranch_scc0 {lab}")
            for r in regs:
                a.e(f"v_mov_b32 v{r}, {neg2}")
            a.label(lab)
        neg2 = f"v{v_tmp + 1}"
        a.e(f"v_mov_b32 {neg2}, {NEG_BITS:#x}")

        dmas = []
        if self._wo_rest:
            dmas.append(lambda: a.e(f"s_mov_b32 m0, s{s_dm0}"))
            dmas += self._wo_rest
        dmas.append(self._xres_loads)
        self.set_wq(4)
        if self.stop_after >= 4:
            dmas += self.dma("g192", SRD_WG, LG0, 0, 256, s_cg, 4, "gh0")
            dmas += self.dma("g192", SRD_WU, LU0, 0, 256, s_cg, 4, "uh0")
        total_w = 9 * 80 + 18 * 190
        slot = [0]

        def dma_slot(weight):
            slot[0] += weight
            tgt = (len(dmas) * slot[0] + total_w - 1) // total_w
            while dma_done[0] < min(tgt, len(dmas)):
                dmas[dma_done[0]]()
                dma_done[0] += 1
        dma_done = [0]
        for n in range(10):
            if n <= 8:
                b = order[n]
                invalidate_at(b, list(range(BI, BI + 16)) + list(range(v_bold, v_bold + 16)))
                smfma(0, b, n & 1, cbias(b))
            if n >= 1:
                maxes(0, (n - 1) & 1)
            if n <= 8:
                smfma(1, b, n & 1, cbias(b))
            if n >= 1:
                maxes(1, (n - 1) & 1)
                dma_slot(80)
        for h in range(2):
            a.e(f"v_max_f32 v{M[h]}, v{M[h]}, v{M[h] + 1}")
            a.e(f"v_mov_b32 v{M[h] + 1}, v{M[h]}")
        for h in range(2):
            a.e(f"v_permlane32_swap_b32 v{M[h]}, v{M[h] + 1}")
        for h in range(2):
            a.e(f"v_max_f32 v{M[h]}, v{M[h]}, v{M[h] + 1}")
            a.e(f"v_sub_f32 v{NEGM[h]}, 0, v{M[h]}")
        for h in range(2):
            a.e(f"v_mov_b32 v{NEGM[h] + 1}, v{NEGM[h]}")
        for h in range(2):
            for r in range(2, 16, 2):
                a.e(f"v_mov_b64 {vr(NEGM[h] + r, 2)}, {vr(NEGM[h], 2)}")
        self.stamp("p2 pass1 done")

        def exp_ops(h, buf):
            s_ = S[h][buf]
            return [f"v_exp_f32 v{s_ + r}, v{s_ + r}" for r in range(16)]

        def pack_ops(h, buf, b):
            s_ = S[h][buf]
            ops = [f"v_cvt_pk_bf16_f32 v{P[h] + i}, v{s_ + 2 * i}, v{s_ + 2 * i + 1}" for i in range(8)]
            if b == 8:
                ops += [f"v_and_b32 v{P[h] + i}, v{v_pmask + i}, v{P[h] + i}" for i in range(8)]
            if b == 0:
                ops += [f"v_bfi_b32 v{P[h] + i}, v{v_pmask + i}, 0, v{P[h] + i}" for i in range(8)]
            return ops

        def pv1(h, b, st):
            c0 = "0" if (b == 8 and st == 0) else vr(O[h], 16)
            return f"v_mfma_f32_32x32x16_bf16 {vr(O[h], 16)}, {self.vreg(b, h, st)}, {vr(P[h] + 4 * st, 4)}, {c0}"

        def s_op(h, n):
            return f"v_mfma_f32_32x32x16_bf16 {vr(S[h][n & 1], 16)}, {self.kreg(order[n], h)}, {Q[h]}, {vr(NEGM[h], 16)}"

        a.e(s_op(0, 0))
        a.e(s_op(1, 0))
        pending = None
        for n in range(9):
            b = order[n]
            if n + 1 <= 8:
                invalidate_at(order[n + 1], list(range(NEGM[0], NEGM[0] + 32)))
            for h in range(2):
                ex = exp_ops(h, n & 1)
                mf = []
                if pending:
                    mf += [pv1(pending[0], pending[1], 0), pv1(pending[0], pending[1], 1)]
                if n + 1 <= 8:
                    mf.append(s_op(h, n + 1))
                for g_ in range(4):
                    for t in ex[4 * g_:4 * g_ + 4]:
                        a.e(t)
                    if g_ < len(mf):
                        a.e(mf[g_])
                for t in pack_ops(h, n & 1, b):
                    a.e(t)
                pending = (h, b)
                dma_slot(190)
        a.e(pv1(pending[0], pending[1], 0))
        a.e(pv1(pending[0], pending[1], 1))
        while dma_done[0] < len(dmas):
            dmas[dma_done[0]]()
            dma_done[0] += 1
        for h in range(2):
            a.e(f"v_rcp_f32 v{M[h]}, v{O[h] + 8}")
            a.e("s_nop 0")
            for r in range(8):
                a.e(f"v_mul_f32 v{O[h] + r}, v{O[h] + r}, v{M[h]}")
            for i in range(4):
                a.e(f"v_cvt_pk_bf16_f32 v{P[h] + i}, v{O[h] + 2 * i}, v{O[h] + 2 * i + 1}")
        self.stamp("p2 done")
        a.e(f"s_lshl_b32 s{s_t3}, s{s_tb}, 15")
        a.e(f"s_lshl_b32 s{s_t4}, s{s_j}, 11")
        a.e(f"s_add_u32 s{s_t3}, s{s_t3}, s{s_t4}")
        a.e(f"s_add_u32 s{s_t3}, s{s_t3}, s{s_arena}")
        self.stores_mode([f"buffer_store_dwordx4 {vr(P[0], 4)}, v{v_l16}, {sr(SRD_WS, 4)}, s{s_t3} offen",
                          f"buffer_store_dwordx4 {vr(P[1], 4)}, v{v_l16}, {sr(SRD_WS, 4)}, s{s_t3} offen offset:1024"], "pub")
        self.cluster_sync(S3)
        self.stamp("s3 done")

    def ksplit_exchange(self, accKeep, accSend, scratch):
        a = self.a
        a.e(f"s_lshl_b32 s{s_t0}, s{s_w}, 12")
        a.e(f"s_add_u32 s{s_t0}, s{s_t0}, {scratch}")
        a.e(f"v_add_u32 v{v_tmp}, s{s_t0}, v{v_l16}")
        a.e(f"v_xor_b32 v{v_tmp + 1}, 8192, v{v_tmp}")
        for i in range(4):
            a.ds(f"ds_write_b128 v{v_tmp}, {vr(accSend + 4 * i, 4)} offset:{1024 * i}")
        a.wait_lg0()
        a.e("s_barrier")
        for i in range(4):
            a.ds(f"ds_read_b128 {vr(accSend + 4 * i, 4)}, v{v_tmp + 1} offset:{1024 * i}")
        a.wait_lg0()
        for r in range(16):
            a.e(f"v_add_f32 v{accKeep + r}, v{accKeep + r}, v{accSend + r}")

    def p3(self):
        a = self.a
        self.frag_base([(s_tb3, 32768), (s_kh, 16384), (s_arena, 1)], 0)
        LEAD = self.opt.get("lead3", 8)
        for p in range(LEAD):
            self.frag_load(ar(4 * p, 4), p, f"ob{p}")
        vk, vs = v_tr, v_tr + 1
        self.tr_base_t128(vk, vs)
        a.e(f"s_lshl_b32 s{s_t0}, s{s_kh}, 15")
        a.e(f"s_add_u32 s{s_t0}, s{s_t0}, {R[3]}")
        a.e(f"v_add_u32 v{vk}, s{s_t0}, v{vk}")
        a.e(f"v_add_u32 v{vs}, s{s_t0}, v{vs}")
        accK, accS = 32, 48
        blocks = [dict(acc=accK, addr=lambda p: (vk, p * 2048, p * 2048 + 1024)),
                  dict(acc=accS, addr=lambda p: (vs, p * 2048, p * 2048 + 1024))]
        self.gemm_pass(16, blocks, lambda p: ar(4 * p, 4), wait_tag=lambda p: f"ob{p}",
                       bload=lambda p: self.frag_load(ar(4 * p, 4), p, f"ob{p}") if p >= LEAD else None, lead=LEAD)
        self.stamp("p3 mfma done")
        a.e("s_barrier")
        self.ksplit_exchange(accK, accS, R[3])
        x = v_xres
        a.e(f"v_permlane32_swap_b32 v{x + 0}, v{x + 2}")
        a.e(f"v_permlane32_swap_b32 v{x + 1}, v{x + 3}")
        a.e(f"v_permlane32_swap_b32 v{x + 4}, v{x + 6}")
        a.e(f"v_permlane32_swap_b32 v{x + 5}, v{x + 7}")
        for i in range(8):
            a.e(f"v_lshlrev_b32 v{64 + 2 * i}, 16, v{x + i}")
            a.e(f"v_and_b32 v{64 + 2 * i + 1}, 0xffff0000, v{x + i}")
        for r in range(16):
            a.e(f"v_add_f32 v{accK + r}, v{accK + r}, v{64 + r}")
        a.e(f"v_add_f32 v64, v{accK}, v{accK + 1}")
        a.e(f"v_mul_f32 v65, v{accK}, v{accK}")
        a.e(f"v_add_f32 v66, v{accK + 2}, v{accK + 3}")
        a.e(f"v_mul_f32 v67, v{accK + 1}, v{accK + 1}")
        a.e(f"v_fmac_f32 v65, v{accK + 2}, v{accK + 2}")
        a.e(f"v_fmac_f32 v67, v{accK + 3}, v{accK + 3}")
        for r in range(4, 16, 2):
            a.e(f"v_add_f32 v64, v64, v{accK + r}")
            a.e(f"v_fmac_f32 v65, v{accK + r}, v{accK + r}")
            a.e(f"v_add_f32 v66, v66, v{accK + r + 1}")
            a.e(f"v_fmac_f32 v67, v{accK + r + 1}, v{accK + r + 1}")
        a.e("v_add_f32 v64, v64, v66")
        a.e("v_add_f32 v65, v65, v67")
        a.e("v_mov_b32 v66, v64")
        a.e("v_mov_b32 v67, v65")
        a.e("v_permlane32_swap_b32 v64, v66")
        a.e("v_permlane32_swap_b32 v65, v67")
        a.e("v_add_f32 v64, v64, v66")
        a.e("v_add_f32 v65, v65, v67")
        a.e(f"v_lshlrev_b32 v66, 3, v{v_lane}")
        a.e(f"s_lshl_b32 s{s_t3}, s{s_tb3}, 12")
        a.e(f"s_lshl_b32 s{s_t4}, s{s_fb}, 8")
        a.e(f"s_add_u32 s{s_t4}, s{s_t4}, s{s_t3}")
        a.e(f"s_add_u32 s{s_t4}, s{s_t4}, {ST}")
        a.e("s_mov_b32 exec_hi, 0")
        self.stores_mode([f"buffer_store_dwordx2 v[64:65], v66, {sr(SRD_WS, 4)}, s{s_t4} offen"], "pub")
        a.e("s_mov_b64 exec, -1")
        for r in range(16):
            a.e(f"v_accvgpr_write_b32 a{128 + r}, v{accK + r}")
        self.cluster_sync(S4A)
        self.stamp("s4a done")
        a.e(f"v_and_b32 v66, 31, v{v_lane}")
        a.e("v_lshlrev_b32 v66, 3, v66")
        a.e(f"v_lshrrev_b32 v67, 5, v{v_lane}")
        a.e("v_lshl_add_u32 v66, v67, 11, v66")
        a.e(f"s_lshl_b32 s{s_t3}, s{s_tb3}, 12")
        a.e(f"s_add_u32 s{s_t3}, s{s_t3}, {ST}")
        for i in range(8):
            off = f" offset:{256 * i}" if i else ""
            a.vmem(f"buffer_load_dwordx2 {vr(68 + 2 * i, 2)}, v66, {sr(SRD_WS, 4)}, s{s_t3} offen{off} sc1", "st")
        a.wait_vm("st")
        for k in (72, 76, 80):
            a.e(f"v_add_f32 v68, v68, v{k}")
            a.e(f"v_add_f32 v69, v69, v{k + 1}")
            a.e(f"v_add_f32 v70, v70, v{k + 2}")
            a.e(f"v_add_f32 v71, v71, v{k + 3}")
        a.e("v_add_f32 v68, v68, v70")
        a.e("v_add_f32 v69, v69, v71")
        a.e("v_mov_b32 v70, v68")
        a.e("v_mov_b32 v71, v69")
        a.e("v_permlane32_swap_b32 v68, v70")
        a.e("v_permlane32_swap_b32 v69, v71")
        a.e("v_add_f32 v68, v68, v70")
        a.e("v_add_f32 v69, v69, v71")
        a.e("v_mov_b32 v72, 0x3b000000")
        a.e("v_mul_f32 v68, v68, v72")
        a.e("v_mul_f32 v69, v69, v72")
        a.e("v_fma_f32 v69, -v68, v68, v69")
        a.e("v_max_f32 v69, 0, v69")
        a.e("v_add_f32 v69, 0x3727c5ac, v69")
        a.e("v_rsq_f32 v69, v69")
        a.e("v_mul_f32 v70, v68, v69")
        a.e("v_sub_f32 v70, 0, v70")
        for r in range(16):
            a.e(f"v_fma_f32 v{accK + r}, v{accK + r}, v69, v70")
        for i in range(8):
            a.e(f"v_cvt_pk_bf16_f32 v{64 + i}, v{accK + 2 * i}, v{accK + 2 * i + 1}")
        a.e(f"s_lshl_b32 s{s_t3}, s{s_tb3}, 15")
        a.e(f"s_lshl_b32 s{s_t4}, s{s_fb}, 11")
        a.e(f"s_add_u32 s{s_t3}, s{s_t3}, s{s_t4}")
        a.e(f"s_add_u32 s{s_t3}, s{s_t3}, s{s_arena}")
        self.stores_mode([f"buffer_store_dwordx4 v[64:67], v{v_l16}, {sr(SRD_WS, 4)}, s{s_t3} offen",
                          f"buffer_store_dwordx4 v[68:71], v{v_l16}, {sr(SRD_WS, 4)}, s{s_t3} offen offset:1024"], "pub")
        self.cluster_sync(S4B)
        self.stamp("s4b done")

    def gelu_ops(self, accG, accU, tmp, pk):
        a = self.a
        ops = []
        K0, K1 = 28, 29
        for r in range(0, 16, 2):
            t0, t1 = tmp + (r & 2), tmp + (r & 2) + 1
            g0, g1, u0, u1 = accG + r, accG + r + 1, accU + r, accU + r + 1
            seq = [
                f"v_mul_f32 v{t0}, v{g0}, v{g0}", f"v_mul_f32 v{t1}, v{g1}, v{g1}",
                f"v_fma_f32 v{t0}, v{t0}, v{K1}, v{K0}", f"v_fma_f32 v{t1}, v{t1}, v{K1}, v{K0}",
                f"v_mul_f32 v{t0}, v{t0}, v{g0}", f"v_mul_f32 v{t1}, v{t1}, v{g1}",
                f"v_exp_f32 v{t0}, v{t0}", f"v_exp_f32 v{t1}, v{t1}",
                f"v_mul_f32 v{u0}, v{g0}, v{u0}", f"v_mul_f32 v{u1}, v{g1}, v{u1}",
                f"v_add_f32 v{t0}, 1.0, v{t0}", f"v_add_f32 v{t1}, 1.0, v{t1}",
                f"v_rcp_f32 v{t0}, v{t0}", f"v_rcp_f32 v{t1}, v{t1}",
            ]
            for t in seq:
                ops.append(lambda t=t: a.e(t))
            fin = [f"v_mul_f32 v{u0}, v{u0}, v{t0}", f"v_mul_f32 v{u1}, v{u1}, v{t1}",
                   f"v_cvt_pk_bf16_f32 v{pk + r // 2}, v{u0}, v{u1}"]
            for t in fin:
                ops.append(lambda t=t: a.e(t))
        return ops

    def tr_base_192(self, dst):
        a = self.a
        t = v_tmp
        a.e(f"v_lshrrev_b32 v{t}, 5, v{v_lane}")
        a.e(f"v_lshlrev_b32 v{t}, 2, v{t}")
        a.e(f"v_bfe_u32 v{t + 1}, v{v_lane}, 2, 2")
        a.e(f"v_add_u32 v{t}, v{t}, v{t + 1}")
        a.e(f"v_mul_u32_u24 v{t}, 192, v{t}")
        a.e(f"v_bfe_u32 v{t + 1}, v{v_lane}, 4, 1")
        a.e(f"v_lshl_add_u32 v{t}, v{t + 1}, 5, v{t}")
        a.e(f"v_and_b32 v{t + 1}, 3, v{v_lane}")
        a.e(f"v_lshl_add_u32 v{dst}, v{t + 1}, 3, v{t}")

    def wd_dma(self, reg, nwaves, tag):
        p0, cnt, base, delta = reg
        return (self.dma("t128", SRD_WD, base, p0 * 16, cnt * 16, s_c128, nwaves, tag, rot4=s_th) +
                self.dma("t128", SRD_WD, base + delta, 688 + p0 * 16, cnt * 16, s_c128, nwaves, tag, rot4=s_th))

    def p4(self):
        a = self.a
        self.frag_base([(s_tb, 32768), (s_arena, 1)], 0)
        LEAD = self.opt.get("lead4", 5)
        for p in range(LEAD):
            self.frag_load(ar(4 * p, 4), p, f"hb{p}")
        self.tr_base_192(v_tr)
        a.e(f"v_add_u32 v{v_tr + 1}, 65536, v{v_tr}")
        a.e(f"v_add_u32 v{v_tr + 2}, 131072, v{v_tr}")
        import struct, math
        k0 = -2.0 * math.sqrt(2.0 / math.pi) * math.log2(math.e)
        k1 = k0 * 0.044715
        a.e(f"v_mov_b32 v28, {struct.unpack('<I', struct.pack('<f', k0))[0]:#x}")
        a.e(f"v_mov_b32 v29, {struct.unpack('<I', struct.pack('<f', k1))[0]:#x}")

        def lds_g(s_):
            return LG0 + s_ * 3072 if s_ < 16 else LG1 + (s_ - 16) * 3072

        def lds_u(s_):
            if s_ < 16:
                return LU0 + s_ * 3072
            if s_ < 21:
                return LU1A + (s_ - 16) * 3072
            if s_ < 29:
                return LU1B + (s_ - 21) * 3072
            return LU1C + (s_ - 29) * 3072

        def addr(fn, pp):
            def f(p):
                base = fn(p) + pp * 64
                w0, w1 = base // 65536, (base + 1536) // 65536
                return (v_tr + w0, base - w0 * 65536, v_tr + w1, base + 1536 - w1 * 65536)
            return f

        accG = [32, 64, 96]
        accU = [48, 80, 112]
        pk = 136
        self.stamp("p4 start")
        self.set_wq(4)
        d1 = self.dma("g192", SRD_WG, LG1, 256, 256, s_cg, 4, "gh1") + self.dma("g192", SRD_WU, LU1A, 256, 80, s_cg, 4, "uh1a")
        d2 = self.dma("g192", SRD_WU, LU1B, 336, 128, s_cg, 4, "uh1b") + self.dma("g192", SRD_WU, LU1C, 464, 48, s_cg, 4, "uh1c")
        sched = {}
        for n, f in enumerate(d1):
            sched.setdefault(1 + (n * 44) // len(d1), []).append(f)
        for n, f in enumerate(d2):
            sched.setdefault(50 + (n * 30) // len(d2), []).append(f)

        def hook(p, n):
            if n == 10:
                a.e("s_barrier")
        blocks = []
        for pp in range(3):
            blocks.append(dict(acc=accG[pp], addr=addr(lds_g, pp)))
            blocks.append(dict(acc=accU[pp], addr=addr(lds_u, pp)))
        if self.opt.get("pretouch", True):
            def act_touch(ps):
                a.e(f"s_mul_i32 s{s_t3}, s{s_tb}, {86 * 1024}")
                a.e(f"s_lshl_b32 s{s_t4}, s{s_p0}, 11")
                a.e(f"s_add_u32 s{s_t3}, s{s_t3}, s{s_t4}")
                a.e(f"s_add_u32 s{s_t3}, s{s_t3}, {ACT + ps * 2048}")
                a.vmem(f"buffer_load_dwordx4 v[240:243], v{v_l16}, {sr(SRD_WS, 4)}, s{s_t3} offen", "actt")
                a.vmem(f"buffer_load_dwordx4 v[240:243], v{v_l16}, {sr(SRD_WS, 4)}, s{s_t3} offen offset:1024", "actt")
            self._act_touch = act_touch
        for n in range(16):
            sched.setdefault(6 * n + 3, []).append(lambda n=n: self.frag_load(ar(4 * (16 + n), 4), 16 + n, f"hb{16 + n}"))
        self.gemm_pass(list(range(16)), blocks, lambda p: ar(4 * p, 4), sched=sched, wait_tag=lambda p: f"hb{p}",
                       abuf=144, step_hook=hook,
                       bload=lambda p: self.frag_load(ar(4 * p, 4), p, f"hb{p}") if p >= LEAD else None, lead=LEAD)
        a.wait_vm("hb31")
        a.wait_vm("uh1c")
        a.e("s_barrier")
        self.stamp("p4 half0 done")
        for pp in range(3):
            fill = []
            if pp == 0 and self.opt.get("pretouch", True):
                fill += [lambda ps=ps: self._act_touch(ps) for ps in range(3)]
            if pp == 0 and self.stop_after >= 5:
                fill += self.wd_dma(WD_X, 4, "wdx")
                fill += self.wd_dma(WD_Y, 4, "wdy")
            if pp >= 1:
                fill += self.gelu_ops(accG[pp - 1], accU[pp - 1], 128, pk)
                fill.append(lambda pp=pp: self.act_store(pp - 1, pk))
            blocks = [dict(acc=accG[pp], addr=addr(lds_g, pp)), dict(acc=accU[pp], addr=addr(lds_u, pp))]
            self.gemm_pass(list(range(16, 32)), blocks, lambda p: ar(4 * p, 4), fillers=fill, zero_init=False, abuf=144)
            self.stamp(f"p4 pair{pp} done")
        for f in self.gelu_ops(accG[2], accU[2], 128, pk):
            f()
        self.act_store(2, pk)
        self.cluster_sync(S5)
        self.stamp("s5 done")

    def act_store(self, ps, pk):
        a = self.a
        a.e(f"s_mul_i32 s{s_t3}, s{s_tb}, {86 * 1024}")
        a.e(f"s_lshl_b32 s{s_t4}, s{s_p0}, 11")
        a.e(f"s_add_u32 s{s_t3}, s{s_t3}, s{s_t4}")
        a.e(f"s_add_u32 s{s_t3}, s{s_t3}, {ACT + ps * 2048}")
        self.stores_mode([f"buffer_store_dwordx4 {vr(pk, 4)}, v{v_l16}, {sr(SRD_WS, 4)}, s{s_t3} offen",
                          f"buffer_store_dwordx4 {vr(pk + 4, 4)}, v{v_l16}, {sr(SRD_WS, 4)}, s{s_t3} offen offset:1024"], "pub")

    def p5(self):
        a = self.a

        def breg(p):
            return ar(4 * p, 4) if p < 32 else ar(144 + 4 * (p - 32), 4)
        self.frag_base([(s_tb3, 86 * 1024), (s_kh, 43 * 1024)], ACT)
        self.set_wq(4)
        LEAD = self.opt.get("lead5", 6)
        for p in range(LEAD):
            self.frag_load(breg(p), p, f"ab{p}")
        pk_, ps_ = v_tr2, v_tr2 + 1
        self.tr_base_t128(pk_, ps_)
        regs = {}
        for n, reg in enumerate((WD_X, WD_Y, WD_Z, WD_W)):
            rk, rs_ = (v_tr + 2 * n, v_tr + 2 * n + 1) if n < 3 else (30, 31)
            a.e(f"s_mul_i32 s{s_t0}, s{s_kh}, {reg[3]}")
            a.e(f"s_add_u32 s{s_t0}, s{s_t0}, {reg[2]}")
            a.e(f"v_add_u32 v{rk}, s{s_t0}, v{pk_}")
            a.e(f"v_add_u32 v{rs_}, s{s_t0}, v{ps_}")
            regs[reg] = (rk, rs_)
        regs[WD_X2] = regs[WD_X]

        def addr(which):
            def f(p):
                for reg in (WD_X, WD_Y, WD_Z, WD_W, WD_X2):
                    if reg[0] <= p < reg[0] + reg[1]:
                        o = (p - reg[0]) * 2048
                        return (regs[reg][which], o, o + 1024)
                raise AssertionError(p)
            return f
        accK, accS = 32, 48
        self.stamp("p5 start")

        def hook(p, n):
            if p == 8:
                a.e("s_barrier")
            if p == 15:
                a.wait_vm("wdz")
                a.e("s_barrier")
            if p == 31:
                a.wait_vm("wdw")
                a.e("s_barrier")
            if p == 37:
                a.wait_vm("wdx2")
                a.e("s_barrier")
        blocks = [dict(acc=accK, addr=addr(0)), dict(acc=accS, addr=addr(1))]
        sched = {}
        z = self.wd_dma(WD_Z, 4, "wdz")
        for n, f in enumerate(z):
            sched.setdefault(1 + (n * 22) // len(z), []).append(f)
        w_ = self.wd_dma(WD_W, 4, "wdw")
        for n, f in enumerate(w_):
            sched.setdefault(26 + (n * 16) // len(w_), []).append(f)
        x2 = self.wd_dma(WD_X2, 4, "wdx2")
        for n, f in enumerate(x2):
            sched.setdefault(44 + (n * 16) // len(x2), []).append(f)
        self.gemm_pass(43, blocks, breg, wait_tag=lambda p: f"ab{p}", step_hook=hook, sched=sched,
                       bload=lambda p: self.frag_load(breg(p), p, f"ab{p}") if p >= LEAD else None, lead=LEAD)
        self.stamp("p5 mfma done")
        a.e("s_barrier")
        self.ksplit_exchange(accK, accS, R[3])
        for r in range(16):
            a.e(f"v_accvgpr_read_b32 v{64 + r}, a{128 + r}")
        for r in range(16):
            a.e(f"v_add_f32 v{accK + r}, v{accK + r}, v{64 + r}")
        for i in range(8):
            a.e(f"v_cvt_pk_bf16_f32 v{64 + i}, v{accK + 2 * i}, v{accK + 2 * i + 1}")
        a.e("v_permlane32_swap_b32 v64, v66")
        a.e("v_permlane32_swap_b32 v65, v67")
        a.e("v_permlane32_swap_b32 v68, v70")
        a.e("v_permlane32_swap_b32 v69, v71")
        a.e(f"v_and_b32 v{v_tmp}, 31, v{v_lane}")
        a.e(f"v_lshrrev_b32 v{v_tmp + 1}, 5, v{v_lane}")
        a.e(f"v_lshlrev_b32 v{v_tmp}, 10, v{v_tmp}")
        a.e(f"v_lshl_add_u32 v{v_tmp + 2}, v{v_tmp + 1}, 4, v{v_tmp}")
        a.e(f"s_lshl_b32 s{s_t1}, s{s_tb3}, 15")
        a.e(f"s_lshl_b32 s{s_t2}, s{s_fb}, 6")
        a.e(f"s_add_u32 s{s_t1}, s{s_t1}, s{s_t2}")
        a.vmem(f"buffer_store_dwordx4 v[64:67], v{v_tmp + 2}, {sr(SRD_OUT, 4)}, s{s_t1} offen", "out")
        a.vmem(f"buffer_store_dwordx4 v[68:71], v{v_tmp + 2}, {sr(SRD_OUT, 4)}, s{s_t1} offen offset:32", "out")
        self.stamp("p5 done")

    def build(self, code_q_instr=8):
        self.code_q_instr = code_q_instr
        self.code_lines = 10
        self.prologue()
        self.p0()
        if self.stop_after >= 1:
            self.p1()
        if self.stop_after >= 2:
            self.p2()
        if self.stop_after >= 3:
            self.p3()
        if self.stop_after >= 4:
            self.p4()
        if self.stop_after >= 5:
            self.p5()
        self.finish()
        self.a.finalize(verbose=True)
        return self.a.text()


HEADER = """; Kernarg layout (80 bytes): A_x, A_wqkv, A_wo, B_x, B_w_gate, B_w_up, B_w_down, d_out, d_debug, d_ws
; @launch grid=(256,1,1) block=(256,1,1) lds=163840
.amdgcn_target "amdgcn-amd-amdhsa--gfx950"
.set CODE_Q, {code_q}
.text
.globl {k}
.p2align 8
.type {k},@function
{k}:
"""

FOOTER = """.section .rodata,"a"
.p2align 6
.amdhsa_kernel {k}
  .amdhsa_next_free_vgpr 512
  .amdhsa_next_free_sgpr 102
  .amdhsa_accum_offset 256
  .amdhsa_group_segment_fixed_size 0
  .amdhsa_kernarg_size 80
  .amdhsa_user_sgpr_count 2
  .amdhsa_user_sgpr_kernarg_segment_ptr 1
  .amdhsa_system_sgpr_workgroup_id_x 1
.end_amdhsa_kernel
"""


def generate(stop_after=99, profile=False, code_q_instr=9, opt=None):
    g = Gen(stop_after, profile, opt)
    body = g.build(code_q_instr)
    src = HEADER.format(k=KNAME, code_q=code_q_instr * 1024) + body + FOOTER.format(k=KNAME)
    return src, g


if __name__ == "__main__":
    import argparse
    ap = argparse.ArgumentParser()
    ap.add_argument("-o", default="sequential_preLN__sliding_block__geglu_ffn__prompt.s")
    ap.add_argument("--stop", type=int, default=99)
    ap.add_argument("--profile", action="store_true")
    args = ap.parse_args()
    src, g = generate(args.stop, args.profile)
    open(args.o, "w").write(src)
    print("wrote", args.o, len(src), "bytes;", len(g.a.out), "lines")
    if args.profile:
        print("stamps:", list(enumerate(g.stamp_names)))
```

```python
import sys
import os
sys.path.insert(0, os.path.dirname(__file__))
from asmdsl import Asm, vr, ar, sr

KNAME = "sequential_preLN__sliding_block__geglu_ffn__prompt_kernel"

XNA = 0x0000000
XNB = 0x0200000
KB = 0x0400000
VB = 0x0600000
OB = XNA
HN = XNA
ACT = 0x0C00000
ST = 0x1200000
FLG = 0x1300000
FLS = 0x1340000
FL2 = 0x1380000
PROF = 0x1400000
WS_BYTES = 0x10000000

R = [i * 32768 for i in range(5)]
LDS_BYTES = 163840
SCR0 = LDS_BYTES - 8192
LG0, LU0, LG1, LU1A, LU1B, LU1C = 49152, 0, 98304, 147456, 0, 49152
WD_A = (0, 7, 18432, 14336)
WD_B = (7, 7, 67584, 14336)
WD_C = (14, 15, 98304, 30720)
WD_D = (29, 4, 0, 8192)
WD_E = (33, 4, 49152, 8192)
WD_A2 = (37, 6, 18432, 14336)
KVS = 49152
LGB, LUB = 98304, 129024

S1, S3, S4A, S4B, S5, S2L = 0, 1, 2, 3, 4, 5

POLL_LIMIT = 400000
FAST_TRIES = 24

SRD_X, SRD_WQKV, SRD_WO, SRD_WG, SRD_WU, SRD_WD, SRD_OUT, SRD_DBG, SRD_WS = 8, 12, 16, 20, 24, 28, 32, 36, 40
s_rb, s_j, s_w, s_tb, s_nonce, s_mode, s_xcc, s_tb3, s_kh, s_cs, s_fb = 44, 45, 46, 47, 48, 49, 50, 51, 52, 53, 54
s_t0, s_t1, s_t2, s_t3, s_t4, s_t5, s_t6, s_t7 = 56, 57, 58, 59, 60, 61, 62, 63
s_wq = 64
s_dm0, s_dso = 65, 66
s_cnt = 67
s_p0 = 68
s_err = 69
s_vmask = 70
s_dir, s_sgn, s_stm, s_sts = 82, 83, 84, 85
s_cq, s_c128, s_cg = 86, 87, 88
s_fbase, s_fcur = 89, 90
s_rot, s_ckv = 93, 94
s_jmp, s_th, s_jl = 95, 96, 97
s_xres = 91
s_arena = 92
s_tm = 100

v_tid, v_lane, v_l16 = 0, 1, 2
v_dq, v_dg, v_d128 = 3, 4, 5
v_dg1, v_dg2 = 24, 25
v_d128b, v_dqb = 20, 21
v_dkv = 26
v_tr = 6
v_tr2 = 22
v_tmp = 12
v_xres = 192
v_bold, v_bdiag, v_pmask = 200, 216, 232
v_vp8 = 240
v_prof = 27

NEG_BITS = 0xF149F2CA


class Gen:
    def __init__(self, stop_after=99, profile=False, opt=None):
        self.a = Asm()
        self.opt = opt or {}
        self.nt = " nt" if self.opt.get("nt", True) else ""
        self.stop_after = stop_after
        self.profile = profile
        self.nstamp = 0

    def stamp(self, name=""):
        if not self.profile:
            return
        a = self.a
        assert self.nstamp < 64
        a.e(f"s_memtime {sr(s_tm, 2)}")
        a.wait_lg0()
        a.e(f"v_writelane_b32 v{v_prof}, s{s_tm}, {self.nstamp}")
        a.c(f"stamp {self.nstamp}: {name}")
        self.stamp_names = getattr(self, "stamp_names", []) + [name]
        self.nstamp += 1

    def dma(self, kind, srd, lds_base, row0, nrows, col_sreg, nwaves, tag, col_imm=0, rot4=None):
        a = self.a
        if kind == "g192":
            rs, rpg, subs = 2752, 16, [(v_dg, 0), (v_dg1, 1024), (v_dg2, 2048)]
        elif kind == "t128":
            rs, rpg, subs = 1024, 16, [(v_d128, 0), (v_d128b, 1024)]
        else:
            rs, rpg, subs = 3072, 32, [(v_dq, 0), (v_dqb, 1024)]
        lstride = 1024 * len(subs)
        assert nrows % rpg == 0, (kind, nrows)
        ngr = nrows // rpg
        per = -(-ngr // nwaves)
        swap = rot4 is not None and per % 2 == 0 and per >= 2

        def setup():
            a.e(f"s_mul_i32 s{s_t0}, s{s_wq}, {per}")
            if per * nwaves != ngr:
                a.e(f"s_min_u32 s{s_t0}, s{s_t0}, {ngr - per}")
            if per > 1:
                a.e(f"s_mul_i32 s{s_t1}, s{s_dir}, {per - 1}")
                a.e(f"s_add_u32 s{s_t0}, s{s_t0}, s{s_t1}")
                a.e(f"s_mul_i32 s{s_stm}, s{s_sgn}, {lstride}")
                a.e(f"s_mul_i32 s{s_sts}, s{s_sgn}, {rpg * rs}")
                if swap:
                    a.e(f"s_mul_i32 s{s_t1}, s{rot4}, {per // 2}")
                    a.e(f"s_mul_i32 s{s_t1}, s{s_t1}, s{s_sgn}")
                    a.e(f"s_add_u32 s{s_t0}, s{s_t0}, s{s_t1}")
                    a.e(f"s_mul_i32 s{s_jmp}, s{rot4}, {per}")
                    a.e(f"s_mul_i32 s{s_jmp}, s{s_jmp}, s{s_sgn}")
            a.e(f"s_mul_i32 s{s_dm0}, s{s_t0}, {lstride}")
            if lds_base:
                a.e(f"s_add_u32 s{s_dm0}, s{s_dm0}, {lds_base}")
            a.e(f"s_mul_i32 s{s_dso}, s{s_t0}, {rpg * rs}")
            a.e(f"s_add_u32 s{s_dso}, s{s_dso}, s{col_sreg}")
            base = row0 * rs + col_imm
            if base:
                a.e(f"s_add_u32 s{s_dso}, s{s_dso}, {base}")
            a.e(f"s_mov_b32 m0, s{s_dm0}")

        ops = []
        for n in range(per):
            for k, (voff, loff) in enumerate(subs):
                def f(n=n, k=k, voff=voff, loff=loff):
                    if n == 0 and k == 0:
                        setup()
                    off = f" offset:{loff}" if loff else ""
                    a.vmem(f"buffer_load_dwordx4 v{voff}, {sr(srd, 4)}, s{s_dso} offen{off} lds", tag)
                    if k == len(subs) - 1 and n != per - 1:
                        if swap and n == per // 2 - 1:
                            a.e(f"s_sub_u32 s{s_t0}, s{s_sgn}, s{s_jmp}")
                            a.e(f"s_mul_i32 s{s_t1}, s{s_t0}, {lstride}")
                            a.e(f"s_add_u32 s{s_dm0}, s{s_dm0}, s{s_t1}")
                            a.e(f"s_mul_i32 s{s_t1}, s{s_t0}, {rpg * rs}")
                            a.e(f"s_add_u32 s{s_dso}, s{s_dso}, s{s_t1}")
                        else:
                            a.e(f"s_add_u32 s{s_dm0}, s{s_dm0}, s{s_stm}")
                            a.e(f"s_add_u32 s{s_dso}, s{s_dso}, s{s_sts}")
                        a.e(f"s_mov_b32 m0, s{s_dm0}")
                ops.append(f)
        return ops

    def set_wq(self, nwaves):
        a = self.a
        if nwaves == 3:
            a.e(f"s_sub_u32 s{s_wq}, s{s_w}, 1")
        elif nwaves == 2:
            a.e(f"s_sub_u32 s{s_wq}, s{s_w}, 2")
        else:
            a.e(f"s_mov_b32 s{s_wq}, s{s_w}")

    def err(self, code):
        pass

    def poll64(self, flag_off_sreg, nlanes_mask=None):
        a = self.a
        lp = a.newlabel("L_poll")
        dn = a.newlabel("L_polld")
        a.e(f"v_lshlrev_b32 v{v_tmp}, 3, v{v_lane}")
        a.e(f"s_mov_b32 s{s_cnt}, 0")
        a.label(lp)
        a.e(f"buffer_load_dword v{v_tmp + 1}, v{v_tmp}, {sr(SRD_WS, 4)}, s{flag_off_sreg} offen sc1")
        a.e("s_waitcnt vmcnt(0)")
        a.e(f"v_cmp_eq_u32 vcc, s{s_nonce}, v{v_tmp + 1}")
        a.e(f"s_add_u32 s{s_cnt}, s{s_cnt}, 1")
        a.e(f"s_cmp_gt_u32 s{s_cnt}, {POLL_LIMIT}")
        a.e(f"s_cbranch_scc1 {dn}")
        a.e("s_cmp_eq_u64 vcc, -1")
        a.e(f"s_cbranch_scc0 {lp}")
        a.label(dn)
        a.e(f"s_cmp_gt_u32 s{s_cnt}, {POLL_LIMIT}")
        a.e(f"s_cselect_b32 s{s_t0}, 1, 0")
        a.e(f"s_or_b32 s{s_err}, s{s_err}, s{s_t0}")

    def flag_store(self, off_sreg):
        a = self.a
        l1 = a.newlabel("L_fs")
        l2 = a.newlabel("L_fe")
        a.e(f"v_mov_b32 v{v_tmp}, s{s_nonce}")
        a.e(f"v_mov_b32 v{v_tmp + 1}, 0")
        a.e("s_mov_b64 exec, 1")
        a.e(f"s_cmp_eq_u32 s{s_mode}, 1")
        a.e(f"s_cbranch_scc0 {l1}")
        a.e(f"buffer_store_dword v{v_tmp}, v{v_tmp + 1}, {sr(SRD_WS, 4)}, s{off_sreg} offen")
        a.e(f"s_branch {l2}")
        a.label(l1)
        a.e(f"buffer_store_dword v{v_tmp}, v{v_tmp + 1}, {sr(SRD_WS, 4)}, s{off_sreg} offen sc1")
        a.label(l2)
        a.vm.append("flag")
        a.e("s_mov_b64 exec, -1")

    def stores_mode(self, lst, tag):
        a = self.a
        l1 = a.newlabel("L_ss")
        l2 = a.newlabel("L_se")
        a.e(f"s_cmp_eq_u32 s{s_mode}, 1")
        a.e(f"s_cbranch_scc0 {l1}")
        for t in lst:
            a.e(t)
        a.e(f"s_branch {l2}")
        a.label(l1)
        for t in lst:
            a.e(t + " sc1")
        a.label(l2)
        for t in lst:
            a.vm.append(tag)

    def cluster_sync(self, sid, window_dma=None):
        a = self.a
        a.wait_vm("pub")
        a.e(f"s_lshl_b32 s{s_t1}, s{s_rb}, 9")
        a.e(f"s_add_u32 s{s_t1}, s{s_t1}, {FLG + sid * 16 * 512}")
        a.e(f"s_lshl_b32 s{s_t2}, s{s_j}, 2")
        a.e(f"s_add_u32 s{s_t2}, s{s_t2}, s{s_w}")
        a.e(f"s_lshl_b32 s{s_t2}, s{s_t2}, 3")
        a.e(f"s_add_u32 s{s_t2}, s{s_t2}, s{s_t1}")
        self.flag_store(s_t2)
        lw = a.newlabel("L_w0")
        le = a.newlabel("L_we")
        a.e(f"s_cmp_eq_u32 s{s_w}, 0")
        a.e(f"s_cbranch_scc1 {lw}")
        if window_dma:
            self.set_wq(3)
            window_dma()
        a.e(f"s_branch {le}")
        a.label(lw)
        self.poll64(s_t1)
        a.label(le)
        a.e("s_barrier")

    def finish(self):
        a = self.a
        a.label("L_finish")
        a.wait_all()
        lskip = a.newlabel("L_noerr")
        a.e(f"s_cmp_eq_u32 s{s_err}, 0")
        a.e(f"s_cbranch_scc1 {lskip}")
        a.e(f"v_mov_b32 v{v_tmp}, s{s_err}")
        a.e(f"v_mov_b32 v{v_tmp + 1}, 4")
        a.e(f"buffer_store_dword v{v_tmp}, v{v_tmp + 1}, {sr(SRD_DBG, 4)}, 0 offen")
        a.label(lskip)
        if self.profile:
            a.e(f"s_lshl_b32 s{s_t0}, s2, 2")
            a.e(f"s_add_u32 s{s_t0}, s{s_t0}, s{s_w}")
            a.e(f"s_lshl_b32 s{s_t0}, s{s_t0}, 8")
            a.e(f"s_add_u32 s{s_t0}, s{s_t0}, {PROF}")
            a.e(f"v_lshlrev_b32 v{v_tmp}, 2, v{v_lane}")
            a.e(f"buffer_store_dword v{v_prof}, v{v_tmp}, {sr(SRD_WS, 4)}, s{s_t0} offen")
        a.e("s_waitcnt vmcnt(0)")
        a.label("L_exit")
        a.e("s_endpgm")

    def prologue(self):
        a = self.a
        a.e("s_cmp_ge_u32 s2, 256")
        a.e("s_cbranch_scc1 L_exit")
        a.e("s_load_dwordx16 s[64:79], s[0:1], 0")
        a.e("s_load_dwordx4 s[56:59], s[0:1], 64")
        if self.profile:
            a.e(f"s_memtime {sr(s_tm, 2)}")
        a.e(f"s_getreg_b32 s{s_xcc}, hwreg(HW_REG_XCC_ID)")
        a.e(f"s_and_b32 s{s_xcc}, s{s_xcc}, 15")
        a.e(f"s_and_b32 s{s_rb}, s2, 7")
        a.e(f"s_lshl_b32 s{s_rb}, s{s_rb}, 1")
        a.e(f"s_bfe_u32 s{s_j}, s2, 0x10003")
        a.e(f"s_add_u32 s{s_rb}, s{s_rb}, s{s_j}")
        a.e(f"s_lshr_b32 s{s_j}, s2, 4")
        a.e(f"v_lshrrev_b32 v{v_tmp}, 6, v0")
        a.e(f"v_and_b32 v{v_lane}, 63, v0")
        a.e(f"v_readfirstlane_b32 s{s_w}, v{v_tmp}")
        a.e(f"v_lshlrev_b32 v{v_l16}, 4, v{v_lane}")
        a.e(f"s_mov_b32 s{s_mode}, 0")
        a.e(f"s_lshl_b32 s{s_tb}, s{s_rb}, 2")
        a.e(f"s_add_u32 s{s_tb}, s{s_tb}, s{s_w}")
        a.e(f"s_and_b32 s{s_cs}, s{s_j}, 7")
        a.e(f"s_lshr_b32 s{s_kh}, s{s_w}, 1")
        a.e(f"s_lshr_b32 s{s_tb3}, s{s_j}, 3")
        a.e(f"s_lshl_b32 s{s_tb3}, s{s_tb3}, 1")
        a.e(f"s_and_b32 s{s_fb}, s{s_w}, 1")
        a.e(f"s_add_u32 s{s_tb3}, s{s_tb3}, s{s_fb}")
        a.e(f"s_lshl_b32 s{s_fb}, s{s_rb}, 2")
        a.e(f"s_add_u32 s{s_tb3}, s{s_tb3}, s{s_fb}")
        a.e(f"s_lshl_b32 s{s_fb}, s{s_cs}, 1")
        a.e(f"s_add_u32 s{s_fb}, s{s_fb}, s{s_kh}")
        a.e(f"s_mul_i32 s{s_p0 + 12}, s{s_j}, 43")
        a.e(f"v_lshrrev_b32 v{v_tmp}, 2, v{v_lane}")
        a.e(f"v_and_b32 v{v_tmp + 1}, 3, v{v_lane}")
        a.e(f"v_lshlrev_b32 v{v_tmp + 1}, 4, v{v_tmp + 1}")
        a.e(f"v_mul_u32_u24 v{v_dq}, 3072, v{v_tmp}")
        a.e(f"v_add_u32 v{v_dq}, v{v_dq}, v{v_tmp + 1}")
        for i, dst in enumerate((v_dg, v_dg1, v_dg2)):
            a.e(f"v_add_u32 v{v_tmp}, {64 * i}, v{v_lane}")
            a.e(f"v_mul_u32_u24 v{v_tmp + 1}, 43691, v{v_tmp}")
            a.e(f"v_lshrrev_b32 v{v_tmp + 1}, 19, v{v_tmp + 1}")
            a.e(f"v_mul_u32_u24 v{v_tmp + 2}, 12, v{v_tmp + 1}")
            a.e(f"v_sub_u32 v{v_tmp + 2}, v{v_tmp}, v{v_tmp + 2}")
            a.e(f"v_mul_u32_u24 v{v_tmp + 1}, 2752, v{v_tmp + 1}")
            a.e(f"v_lshl_add_u32 v{dst}, v{v_tmp + 2}, 4, v{v_tmp + 1}")
        a.e(f"v_lshrrev_b32 v{v_tmp}, 3, v{v_lane}")
        a.e(f"v_and_b32 v{v_tmp + 1}, 7, v{v_lane}")
        a.e(f"v_lshlrev_b32 v{v_tmp + 2}, 1, v{v_tmp}")
        a.e(f"v_and_b32 v{v_tmp + 2}, 4, v{v_tmp + 2}")
        a.e(f"v_xor_b32 v{v_tmp + 1}, v{v_tmp + 1}, v{v_tmp + 2}")
        a.e(f"v_lshlrev_b32 v{v_tmp + 1}, 4, v{v_tmp + 1}")
        a.e(f"v_lshl_add_u32 v{v_d128}, v{v_tmp}, 10, v{v_tmp + 1}")
        a.e(f"v_add_u32 v{v_d128b}, {8 * 1024 - 1024}, v{v_d128}")
        a.e(f"v_add_u32 v{v_dqb}, {16 * 3072 - 1024}, v{v_dq}")
        a.e(f"v_subrev_u32 v{v_dg1}, 1024, v{v_dg1}")
        a.e(f"v_subrev_u32 v{v_dg2}, 2048, v{v_dg2}")
        a.e(f"v_mul_u32_u24 v{v_dkv}, 3072, v{v_tmp}")
        a.e(f"v_add_u32 v{v_dkv}, v{v_dkv}, v{v_tmp + 1}")
        a.e("s_waitcnt lgkmcnt(0)")
        if self.profile:
            a.e(f"v_writelane_b32 v{v_prof}, s{s_tm}, 0")
            self.nstamp = 1
            self.stamp_names = ["start"]
        for srd, lo, nbytes in ((SRD_X, 64, 2048 * 1024), (SRD_WQKV, 66, 512 * 3072), (SRD_WO, 68, 512 * 1024),
                                (SRD_WG, 72, 512 * 2752), (SRD_WU, 74, 512 * 2752), (SRD_WD, 76, 1376 * 1024),
                                (SRD_OUT, 78, 2048 * 1024), (SRD_DBG, 56, 256), (SRD_WS, 58, WS_BYTES)):
            a.e(f"s_mov_b32 s{srd}, s{lo}")
            a.e(f"s_and_b32 s{srd + 1}, s{lo + 1}, 0xffff")
            a.e(f"s_mov_b32 s{srd + 2}, {nbytes}")
            a.e(f"s_mov_b32 s{srd + 3}, 0x20000")
        a.e(f"s_lshr_b32 s{s_p0}, s80, 4")
        a.e(f"s_mov_b32 s{s_err}, 0")
        a.e(f"s_mov_b32 s{s_vmask}, 0xffff")
        a.e(f"s_mov_b32 s{s_vmask + 1}, 0xffff")
        a.e(f"s_bfe_u32 s{s_dir}, s2, 0x10003")
        a.e(f"s_lshl_b32 s{s_sgn}, s{s_dir}, 1")
        a.e(f"s_sub_u32 s{s_sgn}, 1, s{s_sgn}")
        a.e(f"s_lshl_b32 s{s_cq}, s{s_j}, 6")
        a.e(f"s_lshl_b32 s{s_c128}, s{s_cs}, 7")
        a.e(f"s_lshl_b32 s{s_cg}, s{s_p0}, 6")
        a.e(f"s_lshr_b32 s{s_th}, s{s_j}, 3")
        a.e(f"s_and_b32 s{s_jl}, s{s_j}, 1")
        a.e(f"s_lshl_b32 s{s_rot}, s{s_rb}, 2")
        a.e(f"s_lshl_b32 s{s_ckv}, s{s_j}, 7")
        a.e(f"s_add_u32 s{s_ckv}, s{s_ckv}, 1024")

    def kv_dma(self, n0, wmul, wsub, wmin, cnt):
        a = self.a
        a.e(f"s_sub_u32 s{s_t5}, s{s_w}, {wsub}")
        a.e(f"s_mul_i32 s{s_t5}, s{s_t5}, {wmul}")
        if wmin is not None:
            a.e(f"s_min_u32 s{s_t5}, s{s_t5}, {wmin}")
        a.e(f"s_add_u32 s{s_t5}, s{s_t5}, s{s_rot}")
        a.e(f"s_add_u32 s{s_t5}, s{s_t5}, {n0}")
        for i in range(cnt):
            a.e(f"s_and_b32 s{s_t6}, s{s_t5}, 63")
            a.e(f"s_lshl_b32 m0, s{s_t6}, 10")
            a.e(f"s_mul_i32 s{s_t6}, s{s_t6}, {8 * 3072}")
            a.e(f"s_add_u32 s{s_t6}, s{s_t6}, s{s_ckv}")
            a.e(f"buffer_load_dwordx4 v{v_dkv}, {sr(SRD_WQKV, 4)}, s{s_t6} offen lds")
            if i != cnt - 1:
                a.e(f"s_add_u32 s{s_t5}, s{s_t5}, 1")

    def touch_lines(self, srd, n, first_sreg_mul, imm, dst):
        a = self.a
        a.e(f"s_mul_i32 s{s_t0}, s2, {first_sreg_mul * 128}")
        if imm:
            a.e(f"s_add_u32 s{s_t0}, s{s_t0}, {imm}")
        a.e(f"v_lshlrev_b32 v{dst + 1}, 7, v{v_lane}")
        a.e(f"s_mov_b32 exec_lo, {(1 << min(n, 32)) - 1:#x}")
        a.e(f"s_mov_b32 exec_hi, {((1 << (n - 32)) - 1) if n > 32 else 0:#x}")
        a.e(f"buffer_load_dword v{dst}, v{dst + 1}, {sr(srd, 4)}, s{s_t0} offen")
        a.e("s_mov_b64 exec, -1")

    def p0(self):
        a = self.a
        a.e(f"s_lshl_b32 s{s_t0}, s{s_rb}, 7")
        a.e(f"s_lshl_b32 s{s_t1}, s{s_j}, 3")
        a.e(f"s_add_u32 s{s_t0}, s{s_t0}, s{s_t1}")
        a.e(f"s_lshl_b32 s{s_t1}, s{s_w}, 1")
        a.e(f"s_add_u32 s{s_t0}, s{s_t0}, s{s_t1}")
        a.e(f"s_lshl_b32 s{s_t0}, s{s_t0}, 10")
        a.e(f"buffer_load_dwordx4 v[32:35], v{v_l16}, {sr(SRD_X, 4)}, s{s_t0} offen{self.nt}")
        a.e(f"buffer_load_dwordx4 v[36:39], v{v_l16}, {sr(SRD_X, 4)}, s{s_t0} offen offset:1024{self.nt}")
        self.kv_dma(0, 2, 0, None, 2)
        lw1, lw2, lw3, lje = a.newlabel("L_j1"), a.newlabel("L_j2"), a.newlabel("L_j3"), a.newlabel("L_je")
        a.e(f"s_cmp_eq_u32 s{s_w}, 1")
        a.e(f"s_cbranch_scc1 {lw1}")
        a.e(f"s_cmp_eq_u32 s{s_w}, 2")
        a.e(f"s_cbranch_scc1 {lw2}")
        a.e(f"s_cmp_eq_u32 s{s_w}, 3")
        a.e(f"s_cbranch_scc1 {lw3}")
        lnp = a.newlabel("L_nonp")
        a.e("s_cmp_eq_u32 s2, 0")
        a.e(f"s_cbranch_scc0 {lnp}")
        a.e(f"s_memrealtime {sr(s_t2, 2)}")
        a.e("s_waitcnt lgkmcnt(0)")
        a.e(f"s_or_b32 s{s_t2}, s{s_t2}, 1")
        a.e(f"v_mov_b32 v{v_tmp + 4}, s{s_t2}")
        a.e(f"v_mov_b32 v{v_tmp + 5}, 0")
        a.e("s_mov_b64 exec, 1")
        a.e(f"buffer_store_dword v{v_tmp + 4}, v{v_tmp + 5}, {sr(SRD_DBG, 4)}, 0 offen sc1")
        a.e("s_mov_b64 exec, -1")
        a.label(lnp)
        a.e(f"v_and_b32 v{v_tmp}, 7, v{v_lane}")
        a.e(f"v_lshrrev_b32 v{v_tmp + 1}, 3, v{v_lane}")
        a.e(f"v_lshlrev_b32 v{v_tmp + 3}, 9, v{v_tmp + 1}")
        a.e(f"v_lshl_add_u32 v{v_tmp + 3}, v{v_tmp}, 4, v{v_tmp + 3}")
        a.e(f"s_lshr_b32 s{s_t0}, s{s_j}, 2")
        a.e(f"s_lshl_b32 s{s_t1}, s{s_rb}, 2")
        a.e(f"s_add_u32 s{s_t0}, s{s_t0}, s{s_t1}")
        a.e(f"s_lshl_b32 s{s_t0}, s{s_t0}, 15")
        a.e(f"s_and_b32 s{s_t1}, s{s_j}, 3")
        a.e(f"s_lshl_b32 s{s_t1}, s{s_t1}, 7")
        a.e(f"s_add_u32 s{s_t0}, s{s_t0}, s{s_t1}")
        for i in range(8):
            a.e(f"s_add_u32 s{s_t1}, s{s_t0}, {XNA + i * 4096}")
            a.e(f"buffer_load_dwordx4 v[28:31], v{v_tmp + 3}, {sr(SRD_WS, 4)}, s{s_t1} offen")
        a.e(f"s_branch {lje}")
        a.label(lw1)
        a.e(f"v_lshrrev_b32 v{v_tmp}, 3, v{v_lane}")
        a.e(f"v_and_b32 v{v_tmp + 1}, 7, v{v_lane}")
        a.e(f"v_lshlrev_b32 v{v_tmp}, 13, v{v_tmp}")
        a.e(f"v_lshl_add_u32 v{v_tmp}, v{v_tmp + 1}, 6, v{v_tmp}")
        a.e(f"s_lshl_b32 s{s_t0}, s{s_rb}, 9")
        a.e(f"s_add_u32 s{s_t0}, s{s_t0}, {FLG}")
        a.e("s_mov_b32 exec_hi, 0xffff")
        a.e(f"buffer_load_dword v28, v{v_tmp}, {sr(SRD_WS, 4)}, s{s_t0} offen")
        a.e("s_mov_b64 exec, -1")
        a.e(f"v_lshlrev_b32 v{v_tmp}, 6, v{v_lane}")
        a.e(f"s_lshl_b32 s{s_t0}, s{s_rb}, 14")
        a.e(f"s_lshl_b32 s{s_t1}, s{s_j}, 10")
        a.e(f"s_add_u32 s{s_t0}, s{s_t0}, s{s_t1}")
        a.e(f"s_add_u32 s{s_t0}, s{s_t0}, {ST}")
        a.e("s_mov_b32 exec_lo, 0xffff")
        a.e("s_mov_b32 exec_hi, 0")
        a.e(f"buffer_load_dword v28, v{v_tmp}, {sr(SRD_WS, 4)}, s{s_t0} offen")
        a.e("s_mov_b64 exec, -1")
        a.e(f"s_getpc_b64 {sr(s_t2, 2)}")
        a.label("L_pcref")
        a.e(f"s_lshr_b32 s{s_t4}, s2, 3")
        a.e(f"s_mul_i32 s{s_t4}, s{s_t4}, {self.code_lines * 128}")
        a.e(f"v_lshlrev_b32 v{v_tmp}, 7, v{v_lane}")
        a.e(f"v_add_u32 v{v_tmp}, s{s_t4}, v{v_tmp}")
        a.e(f"s_mov_b32 exec_lo, {(1 << self.code_lines) - 1:#x}")
        a.e("s_mov_b32 exec_hi, 0")
        a.e(f"global_load_dword v29, v{v_tmp}, {sr(s_t2, 2)}")
        a.e("s_mov_b64 exec, -1")
        a.e(f"s_branch {lje}")
        a.label(lw2)
        if self.opt.get("touch", True):
            a.e(f"s_lshl_b32 s{s_t0}, s2, 4")
            a.e(f"v_add_u32 v{v_tmp}, s{s_t0}, v{v_lane}")
            a.e(f"v_lshrrev_b32 v{v_tmp + 1}, 3, v{v_tmp}")
            a.e(f"v_mul_u32_u24 v{v_tmp + 1}, 3072, v{v_tmp + 1}")
            a.e(f"v_and_b32 v{v_tmp}, 7, v{v_tmp}")
            a.e(f"v_lshl_add_u32 v{v_tmp}, v{v_tmp}, 7, v{v_tmp + 1}")
            a.e("s_mov_b32 exec_lo, 0xffff")
            a.e("s_mov_b32 exec_hi, 0")
            a.e(f"buffer_load_dword v28, v{v_tmp}, {sr(SRD_WQKV, 4)}, 0 offen")
            a.e("s_mov_b64 exec, -1")
            self.touch_lines(SRD_WO, 16, 16, 0, 28)
        a.e(f"s_branch {lje}")
        a.label(lw3)
        if self.opt.get("touch", True) and self.opt.get("touch_early_gu", False):
            self.touch_lines(SRD_WG, 43, 43, 0, 28)
            self.touch_lines(SRD_WU, 43, 43, 0, 30)
        a.label(lje)
        self.consts()
        a.e("s_waitcnt vmcnt(0)")
        self.stamp_div("x arrived", 44)
        ln0 = a.newlabel("L_nn0")
        a.e(f"s_cmp_eq_u32 s{s_w}, 0")
        a.e(f"s_cbranch_scc0 {ln0}")
        a.e(f"v_mov_b32 v{v_tmp + 1}, 0")
        a.e(f"buffer_load_dword v100, v{v_tmp + 1}, {sr(SRD_DBG, 4)}, 0 offen sc1")
        a.label(ln0)
        self.kv_dma(8, 7, 0, None, 7)
        self.ln_rows(32, 36, 56, 60)
        a.e(f"s_lshl_b32 s{s_t0}, s{s_w}, 11")
        a.e(f"s_add_u32 s{s_t0}, s{s_t0}, {SCR0}")
        a.e(f"v_add_u32 v{v_tmp}, s{s_t0}, v{v_l16}")
        a.e(f"ds_write_b128 v{v_tmp}, v[112:115]")
        a.e(f"ds_write_b128 v{v_tmp}, v[116:119] offset:1024")
        ln = a.newlabel("L_nn")
        a.e(f"s_cmp_eq_u32 s{s_w}, 0")
        a.e(f"s_cbranch_scc0 {ln}")
        lp = a.newlabel("L_np")
        ld = a.newlabel("L_npd")
        a.e("s_waitcnt vmcnt(7)")
        a.e(f"v_readfirstlane_b32 s{s_nonce}, v100")
        a.e(f"s_mov_b32 s{s_cnt}, 0")
        a.e(f"s_cmp_lg_u32 s{s_nonce}, 0")
        a.e(f"s_cbranch_scc1 {ld}")
        a.e(f"v_mov_b32 v{v_tmp + 1}, 0")
        a.label(lp)
        a.e(f"buffer_load_dword v{v_tmp + 2}, v{v_tmp + 1}, {sr(SRD_DBG, 4)}, 0 offen sc1")
        a.e("s_waitcnt vmcnt(0)")
        a.e(f"v_readfirstlane_b32 s{s_nonce}, v{v_tmp + 2}")
        a.e(f"s_add_u32 s{s_cnt}, s{s_cnt}, 1")
        a.e(f"s_cmp_gt_u32 s{s_cnt}, {POLL_LIMIT}")
        a.e(f"s_cbranch_scc1 {ld}")
        a.e(f"s_cmp_eq_u32 s{s_nonce}, 0")
        a.e(f"s_cbranch_scc1 {lp}")
        a.label(ld)
        a.e(f"s_cmp_gt_u32 s{s_cnt}, {POLL_LIMIT}")
        a.e(f"s_cselect_b32 s{s_t0}, 1, 0")
        a.e(f"s_or_b32 s{s_err}, s{s_err}, s{s_t0}")
        a.label(ln)
        a.e("s_waitcnt lgkmcnt(0)")
        a.e("s_barrier")
        self.stamp("p0 ln done")
        lo = a.newlabel("L_s1o")
        le = a.newlabel("L_s1e")
        a.e(f"s_cmp_eq_u32 s{s_w}, 0")
        a.e(f"s_cbranch_scc0 {lo}")
        a.e(f"v_and_b32 v{v_tmp}, 7, v{v_lane}")
        a.e(f"v_lshrrev_b32 v{v_tmp + 1}, 3, v{v_lane}")
        a.e(f"v_lshlrev_b32 v{v_tmp + 2}, 10, v{v_tmp}")
        a.e(f"v_lshl_add_u32 v{v_tmp + 2}, v{v_tmp + 1}, 4, v{v_tmp + 2}")
        a.e(f"v_add_u32 v{v_tmp + 2}, {SCR0}, v{v_tmp + 2}")
        for i in range(8):
            a.e(f"ds_read_b128 {vr(32 + 4 * i, 4)}, v{v_tmp + 2} offset:{128 * i}")
        a.e(f"v_lshlrev_b32 v{v_tmp + 3}, 9, v{v_tmp + 1}")
        a.e(f"v_lshl_add_u32 v{v_tmp + 3}, v{v_tmp}, 4, v{v_tmp + 3}")
        a.e(f"s_lshr_b32 s{s_t0}, s{s_j}, 2")
        a.e(f"s_lshl_b32 s{s_t1}, s{s_rb}, 2")
        a.e(f"s_add_u32 s{s_t0}, s{s_t0}, s{s_t1}")
        a.e(f"s_lshl_b32 s{s_t0}, s{s_t0}, 15")
        a.e(f"s_and_b32 s{s_t1}, s{s_j}, 3")
        a.e(f"s_lshl_b32 s{s_t1}, s{s_t1}, 7")
        a.e(f"s_add_u32 s{s_t0}, s{s_t0}, s{s_t1}")
        a.e("s_waitcnt lgkmcnt(0)")
        for i in range(8):
            a.e(f"s_add_u32 s{s_t1}, s{s_t0}, {XNA + i * 4096}")
            a.e(f"buffer_store_dwordx4 {vr(32 + 4 * i, 4)}, v{v_tmp + 3}, {sr(SRD_WS, 4)}, s{s_t1} offen")
        a.e(f"s_lshl_b32 s{s_t2}, s{s_rb}, 9")
        a.e(f"s_add_u32 s{s_t2}, s{s_t2}, {FLG + S1 * 16 * 512}")
        a.e(f"s_lshl_b32 s{s_t3}, s{s_j}, 3")
        a.e(f"s_add_u32 s{s_t3}, s{s_t3}, s{s_t2}")
        a.e(f"v_mov_b32 v{v_tmp + 4}, s{s_nonce}")
        a.e(f"v_mov_b32 v{v_tmp + 5}, s{s_xcc}")
        a.e(f"v_mov_b32 v{v_tmp + 6}, 0")
        a.e(f"s_lshl_b32 s{s_t4}, s{s_rb}, 11")
        a.e(f"s_add_u32 s{s_t4}, s{s_t4}, {FLS}")
        a.e(f"v_lshlrev_b32 v{v_tmp}, 3, v{v_lane}")
        a.e(f"v_lshlrev_b32 v{v_tmp + 1}, 7, v{v_lane}")
        a.e("s_waitcnt vmcnt(0)")
        a.e("s_mov_b64 exec, 1")
        a.e(f"buffer_store_dwordx2 {vr(v_tmp + 4, 2)}, v{v_tmp + 6}, {sr(SRD_WS, 4)}, s{s_t3} offen")
        a.e("s_mov_b64 exec, 0xffff")
        a.e(f"s_mov_b32 s{s_cnt}, 0")
        lp = a.newlabel("L_s1p")
        lp2 = a.newlabel("L_s1p2")
        lslow = a.newlabel("L_s1s")
        lfast = a.newlabel("L_s1f")
        ldone = a.newlabel("L_s1d")
        lnopub = a.newlabel("L_s1np")
        a.e(f"buffer_load_dwordx2 v[100:101], v{v_tmp}, {sr(SRD_WS, 4)}, s{s_t2} offen sc1")
        a.e("s_barrier")
        a.e(f"s_branch {lp2}")
        a.label(lp)
        a.e(f"buffer_load_dwordx2 v[100:101], v{v_tmp}, {sr(SRD_WS, 4)}, s{s_t2} offen sc1")
        a.label(lp2)
        a.e("s_waitcnt vmcnt(0)")
        a.e(f"v_cmp_eq_u32 vcc, s{s_nonce}, v100")
        a.e(f"v_cmp_eq_u32 {sr(s_t6, 2)}, s{s_xcc}, v101")
        a.e(f"s_add_u32 s{s_cnt}, s{s_cnt}, 1")
        a.e("s_nop 0")
        a.e(f"s_and_b64 vcc, vcc, {sr(s_t6, 2)}")
        a.e("s_cmp_eq_u64 vcc, 0xffff")
        a.e(f"s_cbranch_scc1 {lfast}")
        a.e(f"s_cmp_lt_u32 s{s_cnt}, {FAST_TRIES}")
        a.e(f"s_cbranch_scc1 {lp}")
        a.e(f"s_cmp_eq_u32 s{s_cnt}, {FAST_TRIES}")
        a.e(f"s_cbranch_scc0 {lnopub}")
        a.e("s_mov_b64 exec, -1")
        for i in range(8):
            a.e(f"s_add_u32 s{s_t1}, s{s_t0}, {XNB + i * 4096}")
            a.e(f"buffer_store_dwordx4 {vr(32 + 4 * i, 4)}, v{v_tmp + 3}, {sr(SRD_WS, 4)}, s{s_t1} offen sc1")
        a.e("s_waitcnt vmcnt(0)")
        a.e(f"s_lshl_b32 s{s_t5}, s{s_j}, 7")
        a.e(f"s_add_u32 s{s_t5}, s{s_t5}, s{s_t4}")
        a.e("s_mov_b64 exec, 1")
        a.e(f"buffer_store_dword v{v_tmp + 4}, v{v_tmp + 6}, {sr(SRD_WS, 4)}, s{s_t5} offen sc1")
        a.e("s_mov_b64 exec, 0xffff")
        a.label(lnopub)
        a.e(f"buffer_load_dword v102, v{v_tmp + 1}, {sr(SRD_WS, 4)}, s{s_t4} offen sc1")
        a.e("s_waitcnt vmcnt(0)")
        a.e(f"v_cmp_eq_u32 vcc, s{s_nonce}, v102")
        a.e(f"s_cmp_gt_u32 s{s_cnt}, {POLL_LIMIT}")
        a.e(f"s_cbranch_scc1 {lslow}")
        a.e("s_cmp_eq_u64 vcc, 0xffff")
        a.e(f"s_cbranch_scc0 {lp}")
        a.label(lslow)
        a.e(f"s_mov_b32 s{s_mode}, 0")
        a.e(f"s_cmp_gt_u32 s{s_cnt}, {POLL_LIMIT}")
        a.e(f"s_cselect_b32 s{s_t0}, 1, 0")
        a.e(f"s_or_b32 s{s_err}, s{s_err}, s{s_t0}")
        a.e(f"s_branch {ldone}")
        a.label(lfast)
        a.e(f"s_mov_b32 s{s_mode}, 1")
        a.label(ldone)
        a.e("s_mov_b64 exec, -1")
        a.e(f"v_mov_b32 v{v_tmp}, s{s_nonce}")
        a.e(f"v_mov_b32 v{v_tmp + 1}, s{s_mode}")
        a.e(f"v_mov_b32 v{v_tmp + 2}, {SCR0}")
        a.e(f"ds_write_b64 v{v_tmp + 2}, {vr(v_tmp, 2)}")
        a.e("s_waitcnt lgkmcnt(0)")
        a.e(f"s_branch {le}")
        a.label(lo)
        a.e("s_barrier")
        self.kv_dma(36, 10, 1, 18, 10)
        if self.opt.get("touch", True) and not self.opt.get("touch_early_gu", False) and self.opt.get("touch_s1", True):
            lte = a.newlabel("L_te")
            a.e(f"s_cmp_eq_u32 s{s_w}, 3")
            a.e(f"s_cbranch_scc0 {lte}")
            self.touch_lines(SRD_WG, 43, 43, 0, 28)
            self.touch_lines(SRD_WU, 43, 43, 0, 30)
            self.touch_lines(SRD_WD, 43, 43, 0, 32)
            a.e("s_waitcnt vmcnt(3)")
            a.e(f"s_branch {le}")
            a.label(lte)
        a.e("s_waitcnt vmcnt(0)")
        a.label(le)
        a.e("s_barrier")
        a.e(f"v_mov_b32 v{v_tmp + 2}, {SCR0}")
        a.e(f"ds_read_b64 {vr(v_tmp, 2)}, v{v_tmp + 2}")
        a.e("s_waitcnt lgkmcnt(0)")
        a.e(f"v_readfirstlane_b32 s{s_nonce}, v{v_tmp}")
        a.e(f"v_readfirstlane_b32 s{s_mode}, v{v_tmp + 1}")
        self.stamp("s1 done")

    def touch(self, srd, n, dst):
        a = self.a
        gran = self.opt.get("touch_gran", 64)
        cnt = n * 128 // gran
        a.e(f"s_mul_i32 s{s_t0}, s2, {n * 128}")
        a.e(f"v_mul_u32_u24 v{dst + 8}, {gran}, v{v_lane}")
        k = 0
        while cnt > 0:
            m = min(cnt, 64)
            if m < 64:
                a.e(f"s_mov_b32 exec_lo, {(1 << min(m, 32)) - 1:#x}")
                a.e(f"s_mov_b32 exec_hi, {((1 << (m - 32)) - 1) if m > 32 else 0:#x}")
            a.e(f"buffer_load_dword v{dst}, v{dst + 8}, {sr(srd, 4)}, s{s_t0} offen")
            if m < 64:
                a.e("s_mov_b64 exec, -1")
            cnt -= m
            if cnt > 0:
                a.e(f"s_add_u32 s{s_t0}, s{s_t0}, {64 * gran}")

    def stamp_div(self, name, idx):
        if not self.profile:
            return
        a = self.a
        a.e(f"s_memtime {sr(s_tm, 2)}")
        a.e("s_waitcnt lgkmcnt(0)")
        a.e(f"v_writelane_b32 v{v_prof}, s{s_tm}, {idx}")
        self.div_stamps = getattr(self, "div_stamps", []) + [(idx, name)]

    def consts(self):
        a = self.a
        a.e(f"v_mov_b32 v{v_tmp}, 0x3f803f80")
        for i in range(128, 256):
            a.e(f"v_accvgpr_write_b32 a{i}, v{v_tmp}")
        for i in range(16):
            a.e(f"v_mov_b32 v{v_vp8 + i}, v{v_tmp}")
        a.e(f"v_and_b32 v{v_tmp + 1}, 31, v{v_lane}")
        a.e(f"v_lshrrev_b32 v{v_tmp + 2}, 5, v{v_lane}")
        a.e(f"v_lshlrev_b32 v{v_tmp + 2}, 2, v{v_tmp + 2}")
        a.e(f"v_sub_u32 v{v_tmp + 1}, v{v_tmp + 1}, v{v_tmp + 2}")
        a.e(f"v_mov_b32 v{v_tmp + 3}, {NEG_BITS:#x}")
        for r in range(16):
            kk0 = 8 * (r // 4) + r % 4
            a.e(f"v_subrev_u32 v{v_tmp + 4}, {kk0}, v{v_tmp + 1}")
            a.e(f"v_ashrrev_i32 v{v_tmp + 4 + 1 + (r & 1)}, 31, v{v_tmp + 4}")
            m = v_tmp + 5 + (r & 1)
            a.e(f"v_and_b32 v{v_bdiag + r}, v{m}, v{v_tmp + 3}")
            a.e(f"v_bfi_b32 v{v_bold + r}, v{m}, 0, v{v_tmp + 3}")
            if r & 1:
                a.e(f"v_mov_b32 v{v_tmp + 7}, 0xffff")
                a.e(f"v_bfi_b32 v104, v{v_tmp + 7}, v{v_tmp + 5}, v{v_tmp + 6}")
                a.e(f"v_not_b32 v{v_pmask + r // 2}, v104")

    def wave_sum2(self, x0, x1, s0, s1):
        a = self.a
        for ctl in ("row_shr:1", "row_shr:2", "row_shr:4", "row_shr:8"):
            a.e(f"v_add_f32_dpp v{x0}, v{x0}, v{x0} {ctl} row_mask:0xf bank_mask:0xf bound_ctrl:0")
            a.e(f"v_add_f32_dpp v{x1}, v{x1}, v{x1} {ctl} row_mask:0xf bank_mask:0xf bound_ctrl:0")
        for ctl, rm in (("row_bcast:15", "0xa"), ("row_bcast:31", "0xc")):
            a.e(f"v_add_f32_dpp v{x0}, v{x0}, v{x0} {ctl} row_mask:{rm} bank_mask:0xf")
            a.e(f"v_add_f32_dpp v{x1}, v{x1}, v{x1} {ctl} row_mask:{rm} bank_mask:0xf")
        a.e(f"v_readlane_b32 s{s0}, v{x0}, 63")
        a.e(f"v_readlane_b32 s{s1}, v{x1}, 63")

    def ln_rows(self, srcA, srcB, dstA, dstB, pre_move=None):
        a = self.a
        if pre_move is None:
            sA, sB, dA, dB = 32, 36, 112, 116
        else:
            sA, sB, dA, dB = 40, 44, 120, 124
        f0, f1 = 64, 72
        for base, src in ((f0, sA), (f1, sB)):
            for i in range(4):
                a.e(f"v_lshlrev_b32 v{base + 2 * i}, 16, v{src + i}")
                a.e(f"v_and_b32 v{base + 2 * i + 1}, 0xffff0000, v{src + i}")
        t0, t1 = 80, 84
        for base, t in ((f0, t0), (f1, t1)):
            a.e(f"v_add_f32 v{t}, v{base}, v{base + 1}")
            a.e(f"v_add_f32 v{t + 1}, v{base + 2}, v{base + 3}")
            a.e(f"v_add_f32 v{t + 2}, v{base + 4}, v{base + 5}")
            a.e(f"v_add_f32 v{t + 3}, v{base + 6}, v{base + 7}")
        for t in (t0, t1):
            a.e(f"v_add_f32 v{t}, v{t}, v{t + 1}")
            a.e(f"v_add_f32 v{t + 2}, v{t + 2}, v{t + 3}")
        for t in (t0, t1):
            a.e(f"v_add_f32 v{t}, v{t}, v{t + 2}")
        self.wave_sum2(t0, t1, s_t0, s_t1)
        a.e("v_mov_b32 v88, 0xbb000000")
        for base, s in ((f0, s_t0), (f1, s_t1)):
            for i in range(8):
                a.e(f"v_fma_f32 v{base + i}, s{s}, v88, v{base + i}")
        for base, t in ((f0, t0), (f1, t1)):
            a.e(f"v_mul_f32 v{t}, v{base}, v{base}")
            a.e(f"v_mul_f32 v{t + 1}, v{base + 1}, v{base + 1}")
        for i in range(2, 8, 2):
            for base, t in ((f0, t0), (f1, t1)):
                a.e(f"v_fmac_f32 v{t}, v{base + i}, v{base + i}")
                a.e(f"v_fmac_f32 v{t + 1}, v{base + i + 1}, v{base + i + 1}")
        for t in (t0, t1):
            a.e(f"v_add_f32 v{t}, v{t}, v{t + 1}")
        self.wave_sum2(t0, t1, s_t0, s_t1)
        a.e("v_mov_b32 v88, 0x3b000000")
        a.e("v_mov_b32 v89, 0x3727c5ac")
        a.e(f"v_fma_f32 v{t0}, s{s_t0}, v88, v89")
        a.e(f"v_fma_f32 v{t1}, s{s_t1}, v88, v89")
        a.e(f"v_rsq_f32 v{t0}, v{t0}")
        a.e(f"v_rsq_f32 v{t1}, v{t1}")
        for base, t in ((f0, t0), (f1, t1)):
            for i in range(8):
                a.e(f"v_mul_f32 v{base + i}, v{base + i}, v{t}")
        for base, d in ((f0, dA), (f1, dB)):
            for i in range(4):
                a.e(f"v_cvt_pk_bf16_f32 v{d + i}, v{base + 2 * i}, v{base + 2 * i + 1}")

    def tr_base_t64(self, dst, natural):
        a = self.a
        t = v_tmp
        a.e(f"v_lshrrev_b32 v{t}, 5, v{v_lane}")
        a.e(f"v_lshlrev_b32 v{t}, {3 if natural else 2}, v{t}")
        a.e(f"v_bfe_u32 v{t + 1}, v{v_lane}, 2, 2")
        a.e(f"v_add_u32 v{t}, v{t}, v{t + 1}")
        a.e(f"v_lshlrev_b32 v{t}, 6, v{t}")
        a.e(f"v_bfe_u32 v{t + 1}, v{v_lane}, 4, 1")
        a.e(f"v_lshl_add_u32 v{t}, v{t + 1}, 5, v{t}")
        a.e(f"v_and_b32 v{t + 1}, 3, v{v_lane}")
        a.e(f"v_lshl_add_u32 v{dst}, v{t + 1}, 3, v{t}")

    def tr_base_t128(self, dst_keep, dst_send):
        a = self.a
        t = v_tmp
        a.e(f"v_lshrrev_b32 v{t}, 5, v{v_lane}")
        a.e(f"v_lshlrev_b32 v{t}, 2, v{t}")
        a.e(f"v_bfe_u32 v{t + 1}, v{v_lane}, 2, 2")
        a.e(f"v_add_u32 v{t}, v{t}, v{t + 1}")
        a.e(f"v_lshlrev_b32 v{t}, 7, v{t}")
        a.e(f"v_lshrrev_b32 v{t + 1}, 1, v{t + 1}")
        a.e(f"v_xor_b32 v{t + 1}, s{s_kh}, v{t + 1}")
        a.e(f"v_lshl_add_u32 v{t}, v{t + 1}, 6, v{t}")
        a.e(f"v_bfe_u32 v{t + 1}, v{v_lane}, 4, 1")
        a.e(f"v_lshl_add_u32 v{t}, v{t + 1}, 5, v{t}")
        a.e(f"v_and_b32 v{t + 1}, 3, v{v_lane}")
        a.e(f"v_lshl_add_u32 v{dst_keep}, v{t + 1}, 3, v{t}")
        a.e(f"v_xor_b32 v{dst_send}, 64, v{dst_keep}")

    def load_frags(self, dsts, base_off, sreg_mul_terms, n, tag, flags="sc1"):
        a = self.a
        first = True
        for reg, mul in sreg_mul_terms:
            if first:
                a.e(f"s_mul_i32 s{s_t0}, s{reg}, {mul}")
                first = False
            else:
                a.e(f"s_mul_i32 s{s_t1}, s{reg}, {mul}")
                a.e(f"s_add_u32 s{s_t0}, s{s_t0}, s{s_t1}")
        return [self._frag_op(dsts[i], base_off, i, f"{tag}{i}", flags) for i in range(n)]

    def frag_base(self, terms, imm):
        a = self.a
        first = True
        for reg, mul in terms:
            if first:
                a.e(f"s_mul_i32 s{s_fbase}, s{reg}, {mul}")
                first = False
            else:
                a.e(f"s_mul_i32 s{s_t1}, s{reg}, {mul}")
                a.e(f"s_add_u32 s{s_fbase}, s{s_fbase}, s{s_t1}")
        if imm:
            a.e(f"s_add_u32 s{s_fbase}, s{s_fbase}, {imm}")
        self._fb_blk = None

    def frag_load(self, dst, i, tag):
        a = self.a
        blk = i // 4
        if self._fb_blk != blk:
            a.e(f"s_add_u32 s{s_fcur}, s{s_fbase}, {blk * 4096}")
            self._fb_blk = blk
        off = f" offset:{(i % 4) * 1024}" if i % 4 else ""
        a.vmem(f"buffer_load_dwordx4 {dst}, v{v_l16}, {sr(SRD_WS, 4)}, s{s_fcur} offen{off} sc1", tag)

    def _frag_op(self, dst, base_off, i, tag, flags):
        a = self.a

        def f():
            if i % 4 == 0:
                a.e(f"s_add_u32 s{s_t2}, s{s_t0}, {base_off + (i // 4) * 4096}")
            off = f" offset:{(i % 4) * 1024}" if i % 4 else ""
            a.vmem(f"buffer_load_dwordx4 {dst}, v{v_l16}, {sr(SRD_WS, 4)}, s{s_t2} offen{off} {flags}", tag)
        return f

    def gemm_pass(self, steps, blocks, bfrag, fillers=None, nbuf=3, abuf=64, wait_tag=None, zero_init=True,
                  step_hook=None, sched=None, bload=None, lead=6, extra_loads=None):
        a = self.a
        if isinstance(steps, int):
            steps = list(range(steps))
        nb = len(blocks)
        fillers = list(fillers or [])
        sched = sched or {}
        ns = len(steps)
        nm = ns * nb
        done = 0
        self.pass_id = getattr(self, "pass_id", 0) + 1
        pid = self.pass_id

        def reads(n, only=None):
            p = steps[n]
            if step_hook and only in (None, 0):
                step_hook(p, n)
            buf = abuf + (n % nbuf) * 4 * nb
            for bi, b in enumerate(blocks):
                if only is not None and bi != only:
                    continue
                r_ = b["addr"](p)
                if len(r_) == 3:
                    va, o0, o1 = r_
                    vb = va
                else:
                    va, o0, vb, o1 = r_
                assert 0 <= o0 < 65536 and 0 <= o1 < 65536, (o0, o1)
                a.ds(f"ds_read_b64_tr_b16 {vr(buf + 4 * bi, 2)}, v{va} offset:{o0}", f"tr{pid}_{n}")
                a.ds(f"ds_read_b64_tr_b16 {vr(buf + 4 * bi + 2, 2)}, v{vb} offset:{o1}", f"tr{pid}_{n}")

        extra_loads = list(extra_loads or [])
        if bload:
            for n in range(min(lead, ns)):
                bload(steps[n])
        for n in range(min(nbuf - 1, ns)):
            reads(n)
        mcount = 0
        for n in range(ns):
            p = steps[n]
            if wait_tag and wait_tag(p):
                a.wait_vm(wait_tag(p))
            a.wait_lg(f"tr{pid}_{n}")
            buf = abuf + (n % nbuf) * 4 * nb
            for bi, b in enumerate(blocks):
                acc = vr(b["acc"], 16)
                A = vr(buf + 4 * bi, 4)
                B = bfrag(p)
                if b.get("swap"):
                    A, B = B, A
                c = acc if (n > 0 or not zero_init) else "0"
                a.e(f"v_mfma_f32_32x32x16_bf16 {acc}, {A}, {B}, {c}")
                mcount += 1
                if n + nbuf - 1 < ns:
                    reads(n + nbuf - 1, only=bi)
                if bi == 0:
                    if bload and n + lead < ns:
                        bload(steps[n + lead])
                    elif extra_loads:
                        extra_loads.pop(0)()
                for f in sched.get(mcount, []):
                    f()
                target = (len(fillers) * mcount + nm - 1) // nm
                while done < min(target, len(fillers)):
                    fillers[done]()
                    done += 1
        while done < len(fillers):
            fillers[done]()
            done += 1
        for f in extra_loads:
            f()
        for k in sorted(sched):
            if k > nm:
                for f in sched[k]:
                    f()

    def tr_base_t128n(self, d0, d1):
        a = self.a
        t = v_tmp
        a.e(f"v_lshrrev_b32 v{t}, 5, v{v_lane}")
        a.e(f"v_lshlrev_b32 v{t}, 3, v{t}")
        a.e(f"v_bfe_u32 v{t + 1}, v{v_lane}, 2, 2")
        a.e(f"v_add_u32 v{t}, v{t}, v{t + 1}")
        a.e(f"v_lshlrev_b32 v{t}, 7, v{t}")
        a.e(f"v_lshrrev_b32 v{t + 1}, 1, v{t + 1}")
        a.e(f"v_lshl_add_u32 v{t}, v{t + 1}, 6, v{t}")
        a.e(f"v_bfe_u32 v{t + 1}, v{v_lane}, 4, 1")
        a.e(f"v_lshl_add_u32 v{t}, v{t + 1}, 5, v{t}")
        a.e(f"v_and_b32 v{t + 1}, 3, v{v_lane}")
        a.e(f"v_lshl_add_u32 v{d0}, v{t + 1}, 3, v{t}")
        a.e(f"v_xor_b32 v{d1}, 64, v{d0}")

    def p1(self):
        a = self.a
        a.e(f"s_cmp_eq_u32 s{s_mode}, 1")
        a.e(f"s_cselect_b32 s{s_arena}, {XNA}, {XNB}")
        self.frag_base([(s_tb, 32768), (s_arena, 1)], 0)
        LEAD = self.opt.get("lead", 7)
        for p in range(LEAD):
            self.frag_load(ar(4 * p, 4), p, f"xb{p}")
        self.tr_base_t128n(v_tr, v_tr + 1)
        self.stamp("p1 start")
        acc0, acc1, accQ = 32, 48, 96
        lv = a.newlabel("L_kvV")
        le = a.newlabel("L_kvE")
        a.e(f"s_cmp_ge_u32 s{s_j}, 8")
        a.e(f"s_cbranch_scc1 {lv}")
        vm0, lg0, fb0 = list(a.vm), list(a.lg), self._fb_blk
        for variant in range(2):
            if variant == 1:
                a.e(f"s_branch {le}")
                a.label(lv)
                a.vm, a.lg, self._fb_blk = list(vm0), list(lg0), fb0
            blocks = [dict(acc=acc0, addr=lambda p: (v_tr, p * 2048, p * 2048 + 512), swap=(variant == 1)),
                      dict(acc=acc1, addr=lambda p: (v_tr + 1, p * 2048, p * 2048 + 512), swap=(variant == 1))]
            self.set_wq(4)
            wq = self.dma("q64", SRD_WQKV, R[2], 0, 512, s_cq, 4, "wq", rot4=s_jl)
            sched = {}
            lo, hi = self.opt.get("wq_lo", 2), self.opt.get("wq_hi", 44)
            for n, f in enumerate(wq):
                sched.setdefault(lo + (n * (hi - lo)) // len(wq), []).append(f)
            self.gemm_pass(32, blocks, lambda p: ar(4 * p, 4), wait_tag=lambda p: f"xb{p}", sched=sched,
                           bload=lambda p: self.frag_load(ar(4 * p, 4), p, f"xb{p}") if p >= LEAD else None, lead=LEAD)
        a.label(le)
        a.wait_vm("wq")
        a.e("s_barrier")
        self.stamp("p1 kv done")
        kp = 112
        for i in range(8):
            a.e(f"v_cvt_pk_bf16_f32 v{kp + i}, v{acc0 + 2 * i}, v{acc0 + 2 * i + 1}")
        for i in range(8):
            a.e(f"v_cvt_pk_bf16_f32 v{kp + 8 + i}, v{acc1 + 2 * i}, v{acc1 + 2 * i + 1}")
        a.e(f"s_cmp_ge_u32 s{s_j}, 8")
        a.e(f"s_cselect_b32 s{s_t4}, {VB - KB}, 0")
        a.e(f"s_add_u32 s{s_t4}, s{s_t4}, {KB}")
        a.e(f"s_lshl_b32 s{s_t3}, s{s_tb}, 15")
        a.e(f"s_add_u32 s{s_t4}, s{s_t4}, s{s_t3}")
        a.e(f"s_and_b32 s{s_t3}, s{s_j}, 7")
        a.e(f"s_lshl_b32 s{s_t3}, s{s_t3}, 12")
        a.e(f"s_add_u32 s{s_t4}, s{s_t4}, s{s_t3}")
        for i in range(4):
            off = f" offset:{1024 * i}" if i else ""
            a.vmem(f"buffer_store_dwordx4 {vr(kp + 4 * i, 4)}, v{v_l16}, {sr(SRD_WS, 4)}, s{s_t4} offen{off} sc1", "kvst")
        self.tr_base_t64(v_tr + 2, True)
        a.e(f"v_add_u32 v{v_tr + 2}, {R[2]}, v{v_tr + 2}")
        a.e(f"v_and_b32 v{v_tmp}, 31, v{v_lane}")
        a.e(f"v_lshrrev_b32 v{v_tmp + 1}, 5, v{v_lane}")
        a.e(f"v_lshlrev_b32 v{v_tmp}, 10, v{v_tmp}")
        a.e(f"v_lshl_add_u32 v{v_tr + 4}, v{v_tmp + 1}, 4, v{v_tmp}")
        a.e(f"s_lshl_b32 s{s_t1}, s{s_tb3}, 15")
        a.e(f"s_lshl_b32 s{s_t2}, s{s_fb}, 6")
        a.e(f"s_add_u32 s{s_xres}, s{s_t1}, s{s_t2}")
        self.set_wq(4)
        uh0 = self.dma("g192", SRD_WU, LU0, 0, 256, s_cg, 4, "uh0") if self.stop_after >= 4 else []
        nu = self.opt.get("u_in_q", 6)
        sched = {}
        for n, f in enumerate(uh0[:nu]):
            sched.setdefault(1 + (n * 30) // max(nu, 1), []).append(f)
        blocks = [dict(acc=accQ, addr=lambda p: (v_tr + 2, p * 1024, p * 1024 + 256))]
        self.gemm_pass(32, blocks, lambda p: ar(4 * p, 4), sched=sched, abuf=64)
        a.e(f"v_mov_b32 v{v_tmp}, 0x3eb8aa3b")
        for i in range(16):
            a.e(f"v_mul_f32 v{accQ + i}, v{accQ + i}, v{v_tmp}")
        for i in range(8):
            a.e(f"v_cvt_pk_bf16_f32 v{176 + i}, v{accQ + 2 * i}, v{accQ + 2 * i + 1}")
        self.stamp("p1 q done")
        a.wait_vm("kvst")
        a.e(f"s_lshl_b32 s{s_t1}, s{s_j}, 13")
        a.e(f"s_add_u32 s{s_t1}, s{s_t1}, {FL2}")
        a.e(f"s_lshl_b32 s{s_t2}, s{s_tb}, 7")
        a.e(f"s_add_u32 s{s_t2}, s{s_t2}, s{s_t1}")
        a.e(f"v_mov_b32 v{v_tmp}, s{s_nonce}")
        a.e(f"v_mov_b32 v{v_tmp + 1}, 0")
        a.e("s_mov_b64 exec, 1")
        a.vmem(f"buffer_store_dword v{v_tmp}, v{v_tmp + 1}, {sr(SRD_WS, 4)}, s{s_t2} offen sc1", "flag")
        a.e("s_mov_b64 exec, -1")
        a.e(f"s_lshl_b32 s{s_t4}, s{s_rb}, 9")
        a.e(f"s_add_u32 s{s_t4}, s{s_t4}, {FLG + S2L * 16 * 512}")
        a.e(f"s_lshl_b32 s{s_t2}, s{s_j}, 2")
        a.e(f"s_add_u32 s{s_t2}, s{s_t2}, s{s_w}")
        a.e(f"s_lshl_b32 s{s_t2}, s{s_t2}, 3")
        a.e(f"s_add_u32 s{s_t2}, s{s_t2}, s{s_t4}")
        self.flag_store(s_t2)
        self.stamp("p1 flags out")
        for f in uh0[nu:]:
            f()
        wo = self.dma("t128", SRD_WO, R[3], 0, 512, s_c128, 4, "wo", rot4=s_th) if self.stop_after >= 3 else []
        nw = self.opt.get("wo_in_s2", 6)
        for f in wo[:nw]:
            f()
        le = a.newlabel("L_s2e")
        a.e(f"s_cmp_eq_u32 s{s_w}, 0")
        a.e(f"s_cbranch_scc0 {le}")
        a.e(f"s_lshl_b32 s{s_t3}, s{s_rb}, 2")
        a.e(f"s_sub_u32 s{s_t3}, s{s_t3}, 8")
        a.e(f"v_and_b32 v{v_tmp + 3}, 15, v{v_lane}")
        a.e(f"v_add_u32 v{v_tmp}, s{s_t3}, v{v_tmp + 3}")
        a.e(f"v_mov_b32 v{v_tmp + 2}, s{s_tb}")
        a.e(f"v_ashrrev_i32 v{v_tmp + 1}, 31, v{v_tmp}")
        a.e(f"v_bfi_b32 v{v_tmp}, v{v_tmp + 1}, v{v_tmp + 2}, v{v_tmp}")
        a.e(f"v_lshlrev_b32 v{v_tmp}, 7, v{v_tmp}")
        a.e(f"v_lshrrev_b32 v{v_tmp + 1}, 4, v{v_lane}")
        a.e(f"s_lshr_b32 s{s_t3}, s{s_j}, 1")
        a.e(f"v_lshl_add_u32 v{v_tmp + 1}, v{v_tmp + 1}, 3, s{s_t3}")
        a.e(f"v_lshl_add_u32 v{v_tmp}, v{v_tmp + 1}, 13, v{v_tmp}")
        a.e(f"s_mov_b32 s{s_t1}, {FL2}")
        a.e("s_mov_b32 exec_lo, 0x0fff0fff")
        a.e("s_mov_b32 exec_hi, 0")
        a.e(f"s_mov_b32 s{s_cnt}, 0")
        lp = a.newlabel("L_s2p")
        ld = a.newlabel("L_s2d")
        a.label(lp)
        a.e(f"buffer_load_dword v{v_tmp + 1}, v{v_tmp}, {sr(SRD_WS, 4)}, s{s_t1} offen sc1")
        a.e("s_waitcnt vmcnt(0)")
        a.e(f"v_cmp_eq_u32 vcc, s{s_nonce}, v{v_tmp + 1}")
        a.e(f"s_add_u32 s{s_cnt}, s{s_cnt}, 1")
        a.e(f"s_cmp_gt_u32 s{s_cnt}, {POLL_LIMIT}")
        a.e(f"s_cbranch_scc1 {ld}")
        a.e("s_cmp_eq_u64 vcc, 0x0fff0fff")
        a.e(f"s_cbranch_scc1 {ld}")
        a.e("s_sleep 1")
        a.e(f"s_branch {lp}")
        a.label(ld)
        a.e("s_mov_b64 exec, -1")
        a.e(f"s_cmp_gt_u32 s{s_cnt}, {POLL_LIMIT}")
        a.e(f"s_cselect_b32 s{s_t0}, 1, 0")
        a.e(f"s_or_b32 s{s_err}, s{s_err}, s{s_t0}")
        self.poll64(s_t4)
        a.label(le)
        a.e("s_barrier")
        self.stamp("s2 done")
        for i in range(3):
            a.e(f"s_mul_i32 s{s_t0}, s{s_w}, 3")
            a.e(f"s_lshl_b32 s{s_t1}, s{s_rb}, 2")
            a.e(f"s_add_u32 s{s_t1}, s{s_t1}, s{s_t0}")
            a.e(f"s_add_u32 s{s_t1}, s{s_t1}, {i}")
            a.e(f"s_sub_i32 s{s_t1}, s{s_t1}, 8")
            a.e(f"s_max_i32 s{s_t1}, s{s_t1}, 0")
            a.e(f"s_lshl_b32 s{s_t1}, s{s_t1}, 15")
            a.e(f"s_lshl_b32 s{s_t2}, s{s_j}, 11")
            a.e(f"s_add_u32 s{s_t1}, s{s_t1}, s{s_t2}")
            a.e(f"s_add_u32 s{s_t0}, s{s_t0}, {i}")
            a.e(f"s_lshl_b32 s{s_t0}, s{s_t0}, 12")
            a.e(f"s_add_u32 s{s_t0}, s{s_t0}, {KVS}")
            for part, gbase in ((0, KB), (1, KB + 1024), (2, VB), (3, VB + 1024)):
                a.e(f"s_add_u32 m0, s{s_t0}, {part * 1024}")
                a.e(f"s_add_u32 s{s_t2}, s{s_t1}, {gbase}")
                a.vmem(f"buffer_load_dwordx4 v{v_l16}, {sr(SRD_WS, 4)}, s{s_t2} offen sc1 lds", "kvs")
        self._wo_rest = wo[nw:]

        def xres_loads():
            a.vmem(f"buffer_load_dwordx4 {vr(v_xres, 4)}, v{v_tr + 4}, {sr(SRD_X, 4)}, s{s_xres} offen", "xres")
            a.vmem(f"buffer_load_dwordx4 {vr(v_xres + 4, 4)}, v{v_tr + 4}, {sr(SRD_X, 4)}, s{s_xres} offen offset:32", "xres")
        self._xres_loads = xres_loads
        a.wait_vm("kvs")
        a.e("s_barrier")
        self.stamp("kv staged")

    def kreg(self, b, h):
        return ar((b * 2 + h) * 4, 4)

    def vreg(self, b, h, st):
        if b < 8:
            return ar(128 + ((b * 2 + h) * 2 + st) * 4, 4)
        return vr(v_vp8 + (h * 2 + st) * 4, 4)

    def p2(self):
        a = self.a
        a.e(f"s_lshl_b32 s{s_t0}, s{s_w}, 12")
        a.e(f"s_add_u32 s{s_t0}, s{s_t0}, {KVS}")
        a.e(f"v_add_u32 v{v_tmp + 2}, s{s_t0}, v{v_l16}")

        def kread(b):
            for h in range(2):
                a.ds(f"ds_read_b128 {self.kreg(b, h)}, v{v_tmp + 2} offset:{b * 4096 + h * 1024}", f"k{b}")

        def vread(b):
            a.e(f"s_mov_b64 exec, {sr(s_vmask, 2)}")
            for h in range(2):
                for st in range(2):
                    a.ds(f"ds_read_b128 {self.vreg(b, h, st)}, v{v_tmp + 2} offset:{b * 4096 + 2048 + st * 1024 + h * 256}", f"v{b}")
            a.e("s_mov_b64 exec, -1")
        for b in (8, 7, 6):
            kread(b)
        Q = [vr(176, 4), vr(180, 4)]
        S = [[32, 48], [64, 80]]
        NEGM = [96, 112]
        O = [128, 144]
        P = [160, 168]
        M = [184, 186]
        neg = f"v{v_tmp}"
        a.e(f"v_mov_b32 {neg}, {NEG_BITS:#x}")
        for h in range(2):
            a.e(f"v_mov_b32 v{M[h]}, {neg}")
            a.e(f"v_mov_b32 v{M[h] + 1}, {neg}")
        BI = 160
        for r in range(0, 16, 2):
            a.e(f"v_mov_b64 {vr(BI + r, 2)}, 0")

        def skip_label(b):
            return None

        def cbias(b):
            if b == 0:
                return vr(v_bold, 16)
            if b == 8:
                return vr(v_bdiag, 16)
            return vr(BI, 16)

        order = list(range(8, -1, -1))

        def smfma(h, b, buf, c):
            a.e(f"v_mfma_f32_32x32x16_bf16 {vr(S[h][buf], 16)}, {self.kreg(b, h)}, {Q[h]}, {c}")

        def maxes(h, buf):
            s = S[h][buf]
            for i in range(8):
                m = M[h] + (i & 1)
                a.e(f"v_max3_f32 v{m}, v{s + 2 * i}, v{s + 2 * i + 1}, v{m}")

        def invalidate_at(b, regs):
            if b == 8:
                return
            lab = a.newlabel("L_g")
            a.e(f"s_cmp_eq_u32 s{s_tb}, {7 - b}")
            a.e(f"s_cbranch_scc0 {lab}")
            for r in regs:
                a.e(f"v_mov_b32 v{r}, {neg2}")
            a.label(lab)
        neg2 = f"v{v_tmp + 1}"
        a.e(f"v_mov_b32 {neg2}, {NEG_BITS:#x}")

        dmas = []
        if self._wo_rest:
            dmas.append(lambda: a.e(f"s_mov_b32 m0, s{s_dm0}"))
            dmas += self._wo_rest
        dmas.append(self._xres_loads)
        self.set_wq(4)
        n_early = len(dmas)
        if self.stop_after >= 4:
            dmas += self.dma("g192", SRD_WG, LG0, 0, 256, s_cg, 4, "gh0")
        total_w = 9 * 80 + 16 * 190
        slot = [0]

        def dma_slot(weight):
            slot[0] += weight
            tgt = (len(dmas) * slot[0] + total_w - 1) // total_w
            if weight == 80:
                tgt = min(tgt, n_early)
            while dma_done[0] < min(tgt, len(dmas)):
                dmas[dma_done[0]]()
                dma_done[0] += 1
        dma_done = [0]
        for n in range(10):
            if n + 3 <= 8:
                kread(order[n + 3])
            if n >= 1:
                vread(order[n - 1])
            if n <= 8:
                b = order[n]
                a.wait_lg(f"k{b}")
                invalidate_at(b, list(range(BI, BI + 16)) + list(range(v_bold, v_bold + 16)))
                smfma(0, b, n & 1, cbias(b))
            if n >= 1:
                maxes(0, (n - 1) & 1)
            if n <= 8:
                smfma(1, b, n & 1, cbias(b))
            if n >= 1:
                maxes(1, (n - 1) & 1)
                dma_slot(80)
        for h in range(2):
            a.e(f"v_max_f32 v{M[h]}, v{M[h]}, v{M[h] + 1}")
            a.e(f"v_mov_b32 v{M[h] + 1}, v{M[h]}")
        for h in range(2):
            a.e(f"v_permlane32_swap_b32 v{M[h]}, v{M[h] + 1}")
        for h in range(2):
            a.e(f"v_max_f32 v{M[h]}, v{M[h]}, v{M[h] + 1}")
            a.e(f"v_sub_f32 v{NEGM[h]}, 0, v{M[h]}")
        for h in range(2):
            a.e(f"v_mov_b32 v{NEGM[h] + 1}, v{NEGM[h]}")
        for h in range(2):
            for r in range(2, 16, 2):
                a.e(f"v_mov_b64 {vr(NEGM[h] + r, 2)}, {vr(NEGM[h], 2)}")
        a.wait_lg0()
        a.e("s_barrier")
        self.stamp("p2 pass1 done")

        def exp_ops(h, buf):
            s_ = S[h][buf]
            return [f"v_exp_f32 v{s_ + r}, v{s_ + r}" for r in range(16)]

        def pack_ops(h, buf, b):
            s_ = S[h][buf]
            ops = [f"v_cvt_pk_bf16_f32 v{P[h] + i}, v{s_ + 2 * i}, v{s_ + 2 * i + 1}" for i in range(8)]
            if b == 8:
                ops += [f"v_and_b32 v{P[h] + i}, v{v_pmask + i}, v{P[h] + i}" for i in range(8)]
            if b == 0:
                ops += [f"v_bfi_b32 v{P[h] + i}, v{v_pmask + i}, 0, v{P[h] + i}" for i in range(8)]
            return ops

        def pv1(h, b, st):
            c0 = "0" if (b == 8 and st == 0) else vr(O[h], 16)
            return f"v_mfma_f32_32x32x16_bf16 {vr(O[h], 16)}, {self.vreg(b, h, st)}, {vr(P[h] + 4 * st, 4)}, {c0}"

        def s_op(h, n):
            return f"v_mfma_f32_32x32x16_bf16 {vr(S[h][n & 1], 16)}, {self.kreg(order[n], h)}, {Q[h]}, {vr(NEGM[h], 16)}"

        a.e(s_op(0, 0))
        a.e(s_op(1, 0))
        pending = None
        for n in range(9):
            b = order[n]
            if n + 1 <= 8:
                invalidate_at(order[n + 1], list(range(NEGM[0], NEGM[0] + 32)))
            for h in range(2):
                ex = exp_ops(h, n & 1)
                mf = []
                if pending:
                    mf += [pv1(pending[0], pending[1], 0), pv1(pending[0], pending[1], 1)]
                if n + 1 <= 8:
                    mf.append(s_op(h, n + 1))
                for g_ in range(4):
                    for t in ex[4 * g_:4 * g_ + 4]:
                        a.e(t)
                    if g_ < len(mf):
                        a.e(mf[g_])
                for t in pack_ops(h, n & 1, b):
                    a.e(t)
                pending = (h, b)
                dma_slot(190)
        a.e(pv1(pending[0], pending[1], 0))
        a.e(pv1(pending[0], pending[1], 1))
        while dma_done[0] < len(dmas):
            dmas[dma_done[0]]()
            dma_done[0] += 1
        for h in range(2):
            a.e(f"v_rcp_f32 v{M[h]}, v{O[h] + 8}")
            a.e("s_nop 0")
            for r in range(8):
                a.e(f"v_mul_f32 v{O[h] + r}, v{O[h] + r}, v{M[h]}")
            for i in range(4):
                a.e(f"v_cvt_pk_bf16_f32 v{P[h] + i}, v{O[h] + 2 * i}, v{O[h] + 2 * i + 1}")
        self.stamp("p2 done")
        a.e(f"s_lshl_b32 s{s_t3}, s{s_tb}, 15")
        a.e(f"s_lshl_b32 s{s_t4}, s{s_j}, 11")
        a.e(f"s_add_u32 s{s_t3}, s{s_t3}, s{s_t4}")
        a.e(f"s_add_u32 s{s_t3}, s{s_t3}, s{s_arena}")
        self.stores_mode([f"buffer_store_dwordx4 {vr(P[0], 4)}, v{v_l16}, {sr(SRD_WS, 4)}, s{s_t3} offen",
                          f"buffer_store_dwordx4 {vr(P[1], 4)}, v{v_l16}, {sr(SRD_WS, 4)}, s{s_t3} offen offset:1024"], "pub")
        self.cluster_sync(S3)
        self.stamp("s3 done")

    def ksplit_exchange(self, accKeep, accSend, scratch):
        a = self.a
        a.e(f"s_lshl_b32 s{s_t0}, s{s_w}, 12")
        a.e(f"s_add_u32 s{s_t0}, s{s_t0}, {scratch}")
        a.e(f"v_add_u32 v{v_tmp}, s{s_t0}, v{v_l16}")
        a.e(f"v_xor_b32 v{v_tmp + 1}, 8192, v{v_tmp}")
        for i in range(4):
            a.ds(f"ds_write_b128 v{v_tmp}, {vr(accSend + 4 * i, 4)} offset:{1024 * i}")
        a.wait_lg0()
        a.e("s_barrier")
        for i in range(4):
            a.ds(f"ds_read_b128 {vr(accSend + 4 * i, 4)}, v{v_tmp + 1} offset:{1024 * i}")
        a.wait_lg0()
        for r in range(16):
            a.e(f"v_add_f32 v{accKeep + r}, v{accKeep + r}, v{accSend + r}")

    def p3(self):
        a = self.a
        self.frag_base([(s_tb3, 32768), (s_kh, 16384), (s_arena, 1)], 0)
        LEAD = self.opt.get("lead3", 8)
        for p in range(LEAD):
            self.frag_load(ar(4 * p, 4), p, f"ob{p}")
        vk, vs = v_tr, v_tr + 1
        self.tr_base_t128(vk, vs)
        a.e(f"s_lshl_b32 s{s_t0}, s{s_kh}, 15")
        a.e(f"s_add_u32 s{s_t0}, s{s_t0}, {R[3]}")
        a.e(f"v_add_u32 v{vk}, s{s_t0}, v{vk}")
        a.e(f"v_add_u32 v{vs}, s{s_t0}, v{vs}")
        accK, accS = 32, 48
        blocks = [dict(acc=accK, addr=lambda p: (vk, p * 2048, p * 2048 + 1024)),
                  dict(acc=accS, addr=lambda p: (vs, p * 2048, p * 2048 + 1024))]
        self.gemm_pass(16, blocks, lambda p: ar(4 * p, 4), wait_tag=lambda p: f"ob{p}",
                       bload=lambda p: self.frag_load(ar(4 * p, 4), p, f"ob{p}") if p >= LEAD else None, lead=LEAD)
        self.stamp("p3 mfma done")
        a.e("s_barrier")
        if self.stop_after >= 4 and self.opt.get("gb_early", True):
            self.set_wq(4)
            for f in self.dma("g192", SRD_WG, LGB, 256, 160, s_cg, 4, "gb"):
                f()
        self.ksplit_exchange(accK, accS, 147456)
        x = v_xres
        a.e(f"v_permlane32_swap_b32 v{x + 0}, v{x + 2}")
        a.e(f"v_permlane32_swap_b32 v{x + 1}, v{x + 3}")
        a.e(f"v_permlane32_swap_b32 v{x + 4}, v{x + 6}")
        a.e(f"v_permlane32_swap_b32 v{x + 5}, v{x + 7}")
        for i in range(8):
            a.e(f"v_lshlrev_b32 v{64 + 2 * i}, 16, v{x + i}")
            a.e(f"v_and_b32 v{64 + 2 * i + 1}, 0xffff0000, v{x + i}")
        for r in range(16):
            a.e(f"v_add_f32 v{accK + r}, v{accK + r}, v{64 + r}")
        a.e(f"v_add_f32 v64, v{accK}, v{accK + 1}")
        a.e(f"v_mul_f32 v65, v{accK}, v{accK}")
        a.e(f"v_add_f32 v66, v{accK + 2}, v{accK + 3}")
        a.e(f"v_mul_f32 v67, v{accK + 1}, v{accK + 1}")
        a.e(f"v_fmac_f32 v65, v{accK + 2}, v{accK + 2}")
        a.e(f"v_fmac_f32 v67, v{accK + 3}, v{accK + 3}")
        for r in range(4, 16, 2):
            a.e(f"v_add_f32 v64, v64, v{accK + r}")
            a.e(f"v_fmac_f32 v65, v{accK + r}, v{accK + r}")
            a.e(f"v_add_f32 v66, v66, v{accK + r + 1}")
            a.e(f"v_fmac_f32 v67, v{accK + r + 1}, v{accK + r + 1}")
        a.e("v_add_f32 v64, v64, v66")
        a.e("v_add_f32 v65, v65, v67")
        a.e("v_mov_b32 v66, v64")
        a.e("v_mov_b32 v67, v65")
        a.e("v_permlane32_swap_b32 v64, v66")
        a.e("v_permlane32_swap_b32 v65, v67")
        a.e("v_add_f32 v64, v64, v66")
        a.e("v_add_f32 v65, v65, v67")
        a.e(f"v_lshlrev_b32 v66, 3, v{v_lane}")
        a.e(f"s_lshl_b32 s{s_t3}, s{s_tb3}, 12")
        a.e(f"s_lshl_b32 s{s_t4}, s{s_fb}, 8")
        a.e(f"s_add_u32 s{s_t4}, s{s_t4}, s{s_t3}")
        a.e(f"s_add_u32 s{s_t4}, s{s_t4}, {ST}")
        a.e("s_mov_b32 exec_hi, 0")
        self.stores_mode([f"buffer_store_dwordx2 v[64:65], v66, {sr(SRD_WS, 4)}, s{s_t4} offen"], "pub")
        a.e("s_mov_b64 exec, -1")
        for r in range(16):
            a.e(f"v_accvgpr_write_b32 a{128 + r}, v{accK + r}")
        def win():
            for f in self.dma("g192", SRD_WU, LUB, 256, 160, s_cg, 3, "ub"):
                f()
        a.e("s_barrier")
        self.cluster_sync(S4A, win if (self.stop_after >= 4 and self.opt.get("ub_early", True)) else None)
        self.stamp("s4a done")
        a.e(f"v_and_b32 v66, 31, v{v_lane}")
        a.e("v_lshlrev_b32 v66, 3, v66")
        a.e(f"v_lshrrev_b32 v67, 5, v{v_lane}")
        a.e("v_lshl_add_u32 v66, v67, 11, v66")
        a.e(f"s_lshl_b32 s{s_t3}, s{s_tb3}, 12")
        a.e(f"s_add_u32 s{s_t3}, s{s_t3}, {ST}")
        for i in range(8):
            off = f" offset:{256 * i}" if i else ""
            a.vmem(f"buffer_load_dwordx2 {vr(68 + 2 * i, 2)}, v66, {sr(SRD_WS, 4)}, s{s_t3} offen{off} sc1", "st")
        a.wait_vm("st")
        for k in (72, 76, 80):
            a.e(f"v_add_f32 v68, v68, v{k}")
            a.e(f"v_add_f32 v69, v69, v{k + 1}")
            a.e(f"v_add_f32 v70, v70, v{k + 2}")
            a.e(f"v_add_f32 v71, v71, v{k + 3}")
        a.e("v_add_f32 v68, v68, v70")
        a.e("v_add_f32 v69, v69, v71")
        a.e("v_mov_b32 v70, v68")
        a.e("v_mov_b32 v71, v69")
        a.e("v_permlane32_swap_b32 v68, v70")
        a.e("v_permlane32_swap_b32 v69, v71")
        a.e("v_add_f32 v68, v68, v70")
        a.e("v_add_f32 v69, v69, v71")
        a.e("v_mov_b32 v72, 0x3b000000")
        a.e("v_mul_f32 v68, v68, v72")
        a.e("v_mul_f32 v69, v69, v72")
        a.e("v_fma_f32 v69, -v68, v68, v69")
        a.e("v_max_f32 v69, 0, v69")
        a.e("v_add_f32 v69, 0x3727c5ac, v69")
        a.e("v_rsq_f32 v69, v69")
        a.e("v_mul_f32 v70, v68, v69")
        a.e("v_sub_f32 v70, 0, v70")
        for r in range(16):
            a.e(f"v_fma_f32 v{accK + r}, v{accK + r}, v69, v70")
        for i in range(8):
            a.e(f"v_cvt_pk_bf16_f32 v{64 + i}, v{accK + 2 * i}, v{accK + 2 * i + 1}")
        a.e(f"s_lshl_b32 s{s_t3}, s{s_tb3}, 15")
        a.e(f"s_lshl_b32 s{s_t4}, s{s_fb}, 11")
        a.e(f"s_add_u32 s{s_t3}, s{s_t3}, s{s_t4}")
        a.e(f"s_add_u32 s{s_t3}, s{s_t3}, s{s_arena}")
        self.stores_mode([f"buffer_store_dwordx4 v[64:67], v{v_l16}, {sr(SRD_WS, 4)}, s{s_t3} offen",
                          f"buffer_store_dwordx4 v[68:71], v{v_l16}, {sr(SRD_WS, 4)}, s{s_t3} offen offset:1024"], "pub")
        self.cluster_sync(S4B)
        self.stamp("s4b done")

    def gelu_ops(self, accG, accU, tmp, pk):
        a = self.a
        ops = []
        K0, K1 = 28, 29
        for r in range(0, 16, 2):
            t0, t1 = tmp + (r & 2), tmp + (r & 2) + 1
            g0, g1, u0, u1 = accG + r, accG + r + 1, accU + r, accU + r + 1
            seq = [
                f"v_mul_f32 v{t0}, v{g0}, v{g0}", f"v_mul_f32 v{t1}, v{g1}, v{g1}",
                f"v_fma_f32 v{t0}, v{t0}, v{K1}, v{K0}", f"v_fma_f32 v{t1}, v{t1}, v{K1}, v{K0}",
                f"v_mul_f32 v{t0}, v{t0}, v{g0}", f"v_mul_f32 v{t1}, v{t1}, v{g1}",
                f"v_exp_f32 v{t0}, v{t0}", f"v_exp_f32 v{t1}, v{t1}",
                f"v_mul_f32 v{u0}, v{g0}, v{u0}", f"v_mul_f32 v{u1}, v{g1}, v{u1}",
                f"v_add_f32 v{t0}, 1.0, v{t0}", f"v_add_f32 v{t1}, 1.0, v{t1}",
                f"v_rcp_f32 v{t0}, v{t0}", f"v_rcp_f32 v{t1}, v{t1}",
            ]
            for t in seq:
                ops.append(lambda t=t: a.e(t))
            fin = [f"v_mul_f32 v{u0}, v{u0}, v{t0}", f"v_mul_f32 v{u1}, v{u1}, v{t1}",
                   f"v_cvt_pk_bf16_f32 v{pk + r // 2}, v{u0}, v{u1}"]
            for t in fin:
                ops.append(lambda t=t: a.e(t))
        return ops

    def tr_base_192(self, dst):
        a = self.a
        t = v_tmp
        a.e(f"v_lshrrev_b32 v{t}, 5, v{v_lane}")
        a.e(f"v_lshlrev_b32 v{t}, 2, v{t}")
        a.e(f"v_bfe_u32 v{t + 1}, v{v_lane}, 2, 2")
        a.e(f"v_add_u32 v{t}, v{t}, v{t + 1}")
        a.e(f"v_mul_u32_u24 v{t}, 192, v{t}")
        a.e(f"v_bfe_u32 v{t + 1}, v{v_lane}, 4, 1")
        a.e(f"v_lshl_add_u32 v{t}, v{t + 1}, 5, v{t}")
        a.e(f"v_and_b32 v{t + 1}, 3, v{v_lane}")
        a.e(f"v_lshl_add_u32 v{dst}, v{t + 1}, 3, v{t}")

    def wd_dma(self, reg, nwaves, tag):
        p0, cnt, base, delta = reg
        return (self.dma("t128", SRD_WD, base, p0 * 16, cnt * 16, s_c128, nwaves, tag, rot4=s_th) +
                self.dma("t128", SRD_WD, base + delta, 688 + p0 * 16, cnt * 16, s_c128, nwaves, tag, rot4=s_th))

    def p4(self):
        a = self.a
        self.frag_base([(s_tb, 32768), (s_arena, 1)], 0)
        LEAD = self.opt.get("lead4", 5)
        for p in range(LEAD):
            self.frag_load(ar(4 * p, 4), p, f"hb{p}")
        self.tr_base_192(v_tr)
        a.e(f"v_add_u32 v{v_tr + 1}, 65536, v{v_tr}")
        a.e(f"v_add_u32 v{v_tr + 2}, 131072, v{v_tr}")
        import struct, math
        k0 = -2.0 * math.sqrt(2.0 / math.pi) * math.log2(math.e)
        k1 = k0 * 0.044715
        a.e(f"v_mov_b32 v28, {struct.unpack('<I', struct.pack('<f', k0))[0]:#x}")
        a.e(f"v_mov_b32 v29, {struct.unpack('<I', struct.pack('<f', k1))[0]:#x}")

        def lds_g(s_):
            if s_ < 16:
                return LG0 + s_ * 3072
            if s_ < 26:
                return LGB + (s_ - 16) * 3072
            return LG0 + (s_ - 26) * 3072

        def lds_u(s_):
            if s_ < 16:
                return LU0 + s_ * 3072
            if s_ < 26:
                return LUB + (s_ - 16) * 3072
            return LU0 + (s_ - 26) * 3072

        def addr(fn, pp):
            def f(p):
                base = fn(p) + pp * 64
                w0, w1 = base // 65536, (base + 1536) // 65536
                return (v_tr + w0, base - w0 * 65536, v_tr + w1, base + 1536 - w1 * 65536)
            return f

        accG = [32, 64, 96]
        accU = [48, 80, 112]
        pk = 136
        self.stamp("p4 start")
        self.set_wq(4)
        sched = {}

        def spread(ops, lo, hi):
            for n, f in enumerate(ops):
                sched.setdefault(lo + (n * (hi - lo)) // len(ops), []).append(f)
        o = self.opt
        early = []
        if not o.get("gb_early", True):
            early += self.dma("g192", SRD_WG, LGB, 256, 160, s_cg, 4, "gb")
        if not o.get("ub_early", True):
            early += self.dma("g192", SRD_WU, LUB, 256, 160, s_cg, 4, "ub")
        if early:
            spread(early, 1, o.get("p4_b_hi", 66))
        spread(self.dma("g192", SRD_WG, LG0, 416, 96, s_cg, 4, "gc") + self.dma("g192", SRD_WU, LU0, 416, 96, s_cg, 4, "uc"),
               o.get("p4_c_lo", 40), o.get("p4_c_hi", 100))
        if self.stop_after >= 5:
            spread(self.wd_dma(WD_A, 4, "wda") + self.wd_dma(WD_B, 4, "wdb"), o.get("p4_a_lo", 104), o.get("p4_a_hi", 156))

        def act_touch(ps):
            a.e(f"s_mul_i32 s{s_t3}, s{s_tb}, {86 * 1024}")
            a.e(f"s_lshl_b32 s{s_t4}, s{s_p0}, 11")
            a.e(f"s_add_u32 s{s_t3}, s{s_t3}, s{s_t4}")
            a.e(f"s_add_u32 s{s_t3}, s{s_t3}, {ACT + ps * 2048}")
            a.vmem(f"buffer_load_dwordx4 v[240:243], v{v_l16}, {sr(SRD_WS, 4)}, s{s_t3} offen", "actt")
            a.vmem(f"buffer_load_dwordx4 v[240:243], v{v_l16}, {sr(SRD_WS, 4)}, s{s_t3} offen offset:1024", "actt")
        if o.get("pretouch", True):
            spread([lambda ps=ps: act_touch(ps) for ps in range(3)], o.get("p4_t_lo", 162), o.get("p4_t_lo", 162) + 6)
        wdc = self.wd_dma(WD_C, 4, "wdc") if self.stop_after >= 5 else []
        nc_in = o.get("p4_c_in", 6)
        if wdc:
            spread(wdc[:nc_in], 172, 192)

        def hook(p, n):
            if n == 8:
                a.e("s_barrier")
            if n == 16 and early:
                a.wait_vm("ub")
                a.wait_vm("gb")
                a.e("s_barrier")
            if n == 18:
                a.e("s_barrier")
            if n == 26:
                a.wait_vm("uc")
                a.e("s_barrier")
            if n == 28:
                a.e("s_barrier")
        blocks = []
        for pp in range(3):
            blocks.append(dict(acc=accG[pp], addr=addr(lds_g, pp)))
            blocks.append(dict(acc=accU[pp], addr=addr(lds_u, pp)))
        self.gemm_pass(32, blocks, lambda p: ar(4 * p, 4), sched=sched, wait_tag=lambda p: f"hb{p}",
                       abuf=144, step_hook=hook,
                       bload=lambda p: self.frag_load(ar(4 * p, 4), p, f"hb{p}") if p >= LEAD else None, lead=LEAD)
        self.stamp("p4 mfma done")
        rest = wdc[nc_in:]
        for pp in range(3):
            ops = self.gelu_ops(accG[pp], accU[pp], 128, pk + 8 * (pp & 1))
            k = 0
            nd = 0
            take = rest[:o.get("p4_c_per", 5)] if pp < 2 else []
            rest = rest[len(take):]
            for n, f in enumerate(ops):
                f()
                if nd < len(take) and (n + 1) * len(take) >= (nd + 1) * len(ops):
                    take[nd]()
                    nd += 1
            self.act_store(pp, pk + 8 * (pp & 1))
        self._wdc_rest = rest
        self.stamp("p4 gelu done")
        self.cluster_sync(S5)
        self.stamp("s5 done")

    def act_store(self, ps, pk):
        a = self.a
        a.e(f"s_mul_i32 s{s_t3}, s{s_tb}, {86 * 1024}")
        a.e(f"s_lshl_b32 s{s_t4}, s{s_p0}, 11")
        a.e(f"s_add_u32 s{s_t3}, s{s_t3}, s{s_t4}")
        a.e(f"s_add_u32 s{s_t3}, s{s_t3}, {ACT + ps * 2048}")
        self.stores_mode([f"buffer_store_dwordx4 {vr(pk, 4)}, v{v_l16}, {sr(SRD_WS, 4)}, s{s_t3} offen",
                          f"buffer_store_dwordx4 {vr(pk + 4, 4)}, v{v_l16}, {sr(SRD_WS, 4)}, s{s_t3} offen offset:1024"], "pub")

    def p5(self):
        a = self.a

        def breg(p):
            return ar(4 * p, 4) if p < 32 else ar(144 + 4 * (p - 32), 4)
        self.frag_base([(s_tb3, 86 * 1024), (s_kh, 43 * 1024)], ACT)
        self.set_wq(4)
        LEAD = self.opt.get("lead5", 6)
        for p in range(LEAD):
            self.frag_load(breg(p), p, f"ab{p}")
        pk_, ps_ = v_tr2, v_tr2 + 1
        self.tr_base_t128(pk_, ps_)
        regs = {}
        pairs = [(v_tr, v_tr + 1), (v_tr + 2, v_tr + 3), (v_tr + 4, v_tr + 5), (30, 31), (28, 29)]
        for (rk, rs_), reg in zip(pairs, (WD_A, WD_B, WD_C, WD_D, WD_E)):
            a.e(f"s_mul_i32 s{s_t0}, s{s_kh}, {reg[3]}")
            a.e(f"s_add_u32 s{s_t0}, s{s_t0}, {reg[2]}")
            a.e(f"v_add_u32 v{rk}, s{s_t0}, v{pk_}")
            a.e(f"v_add_u32 v{rs_}, s{s_t0}, v{ps_}")
            regs[reg] = (rk, rs_)
        regs[WD_A2] = regs[WD_A]

        def addr(which):
            def f(p):
                for reg in (WD_A, WD_B, WD_C, WD_D, WD_E, WD_A2):
                    if reg[0] <= p < reg[0] + reg[1]:
                        o = (p - reg[0]) * 2048
                        return (regs[reg][which], o, o + 1024)
                raise AssertionError(p)
            return f
        accK, accS = 32, 48
        self.stamp("p5 start")

        def hook(p, n):
            if p == 9:
                a.e("s_barrier")
            if p == 14:
                a.wait_vm("wdc")
                a.e("s_barrier")
            if p == 29:
                a.wait_vm("wde")
                a.e("s_barrier")
            if p == 37:
                a.wait_vm("wda2")
                a.e("s_barrier")
        blocks = [dict(acc=accK, addr=addr(0)), dict(acc=accS, addr=addr(1))]
        sched = {}

        def spread(ops, lo, hi):
            for n, f in enumerate(ops):
                sched.setdefault(lo + (n * (hi - lo)) // len(ops), []).append(f)
        if self._wdc_rest:
            spread([lambda: a.e(f"s_mov_b32 m0, s{s_dm0}")] + self._wdc_rest, 1, 12)
        spread(self.wd_dma(WD_D, 4, "wdd") + self.wd_dma(WD_E, 4, "wde"), 14, 40)
        spread(self.wd_dma(WD_A2, 4, "wda2"), 42, 62)
        self.gemm_pass(43, blocks, breg, wait_tag=lambda p: f"ab{p}", step_hook=hook, sched=sched,
                       bload=lambda p: self.frag_load(breg(p), p, f"ab{p}") if p >= LEAD else None, lead=LEAD)
        self.stamp("p5 mfma done")
        a.e("s_barrier")
        self.ksplit_exchange(accK, accS, R[3])
        for r in range(16):
            a.e(f"v_accvgpr_read_b32 v{64 + r}, a{128 + r}")
        for r in range(16):
            a.e(f"v_add_f32 v{accK + r}, v{accK + r}, v{64 + r}")
        for i in range(8):
            a.e(f"v_cvt_pk_bf16_f32 v{64 + i}, v{accK + 2 * i}, v{accK + 2 * i + 1}")
        a.e("v_permlane32_swap_b32 v64, v66")
        a.e("v_permlane32_swap_b32 v65, v67")
        a.e("v_permlane32_swap_b32 v68, v70")
        a.e("v_permlane32_swap_b32 v69, v71")
        a.e(f"v_and_b32 v{v_tmp}, 31, v{v_lane}")
        a.e(f"v_lshrrev_b32 v{v_tmp + 1}, 5, v{v_lane}")
        a.e(f"v_lshlrev_b32 v{v_tmp}, 10, v{v_tmp}")
        a.e(f"v_lshl_add_u32 v{v_tmp + 2}, v{v_tmp + 1}, 4, v{v_tmp}")
        a.e(f"s_lshl_b32 s{s_t1}, s{s_tb3}, 15")
        a.e(f"s_lshl_b32 s{s_t2}, s{s_fb}, 6")
        a.e(f"s_add_u32 s{s_t1}, s{s_t1}, s{s_t2}")
        a.vmem(f"buffer_store_dwordx4 v[64:67], v{v_tmp + 2}, {sr(SRD_OUT, 4)}, s{s_t1} offen", "out")
        a.vmem(f"buffer_store_dwordx4 v[68:71], v{v_tmp + 2}, {sr(SRD_OUT, 4)}, s{s_t1} offen offset:32", "out")
        self.stamp("p5 done")

    def build(self, code_q_instr=8):
        self.code_q_instr = code_q_instr
        self.code_lines = 10
        self.prologue()
        self.p0()
        if self.stop_after >= 1:
            self.p1()
        if self.stop_after >= 2:
            self.p2()
        if self.stop_after >= 3:
            self.p3()
        if self.stop_after >= 4:
            self.p4()
        if self.stop_after >= 5:
            self.p5()
        self.finish()
        self.a.finalize(verbose=True)
        return self.a.text()


HEADER = """; Kernarg layout (80 bytes): A_x, A_wqkv, A_wo, B_x, B_w_gate, B_w_up, B_w_down, d_out, d_debug, d_ws
; @launch grid=(256,1,1) block=(256,1,1) lds=163840
.amdgcn_target "amdgcn-amd-amdhsa--gfx950"
.set CODE_Q, {code_q}
.text
.globl {k}
.p2align 8
.type {k},@function
{k}:
"""

FOOTER = """.section .rodata,"a"
.p2align 6
.amdhsa_kernel {k}
  .amdhsa_next_free_vgpr 512
  .amdhsa_next_free_sgpr 102
  .amdhsa_accum_offset 256
  .amdhsa_group_segment_fixed_size 0
  .amdhsa_kernarg_size 80
  .amdhsa_user_sgpr_count 2
  .amdhsa_user_sgpr_kernarg_segment_ptr 1
  .amdhsa_system_sgpr_workgroup_id_x 1
.end_amdhsa_kernel
"""


def generate(stop_after=99, profile=False, code_q_instr=9, opt=None):
    g = Gen(stop_after, profile, opt)
    body = g.build(code_q_instr)
    src = HEADER.format(k=KNAME, code_q=code_q_instr * 1024) + body + FOOTER.format(k=KNAME)
    return src, g


if __name__ == "__main__":
    import argparse
    ap = argparse.ArgumentParser()
    ap.add_argument("-o", default="sequential_preLN__sliding_block__geglu_ffn__prompt.s")
    ap.add_argument("--stop", type=int, default=99)
    ap.add_argument("--profile", action="store_true")
    args = ap.parse_args()
    src, g = generate(args.stop, args.profile)
    open(args.o, "w").write(src)
    print("wrote", args.o, len(src), "bytes;", len(g.a.out), "lines")
    if args.profile:
        print("stamps:", list(enumerate(g.stamp_names)))
```
